```python
import torch

def _softmax(x, axis=-1):
    return torch.softmax(x, dim=axis)
def _gelu(x):
    return torch.nn.functional.gelu(x, approximate="tanh")
def _silu(x):
    return torch.nn.functional.silu(x)
def _sigmoid(x):
    return torch.sigmoid(x)
def _layernorm(x, axis=-1, eps=1e-5):
    m = x.mean(dim=axis, keepdim=True)
    v = x.var(dim=axis, keepdim=True, unbiased=False)
    return (x - m) / torch.sqrt(v + eps)
def _scatter_add(tgt, idx, src, axis=0):
    return tgt.clone().index_add_(axis, idx, src)
def _segment_sum(src, seg, n):
    out = torch.zeros((n,) + src.shape[1:], dtype=src.dtype)
    return out.index_add_(0, seg, src)
def _pad(x, pw):
    flat = tuple(v for pair in reversed(pw) for v in pair)
    return torch.nn.functional.pad(x, flat)

kernel_name = 'concat_heads__mha_block_cached__gqa_block_cached__near_ridge'

def setup_inputs():

    _w = (lambda a: (lambda t: t.to(torch.bfloat16) if t.is_floating_point() else t)(torch.as_tensor(a)))
    def _A_setup():
        B, Sq, D = 8, 288, 512
        H, Sk, Dh = 32, 1024, 128
        return {
            "x": _w((lambda *s: torch.randn(*s, dtype=torch.bfloat16) * 0.8)(B, Sq, D)),
            "k_cache": _w((lambda *s: torch.randn(*s, dtype=torch.bfloat16) * 0.8)(B, H, Sk, Dh)),
            "v_cache": _w((lambda *s: torch.randn(*s, dtype=torch.bfloat16) * 0.05)(B, H, Sk, Dh)),
            "wq": _w((lambda *s: torch.randn(*s, dtype=torch.bfloat16) * 0.8)(D, H * Dh) * (D ** -0.5)),
            "wo": _w((lambda *s: torch.randn(*s, dtype=torch.bfloat16) * 0.05)(H * Dh, D) * ((H * Dh) ** -0.5)),
        }
    _A_in = _A_setup()

    def _B_setup():
        B, Sq, D = 8, 288, 512
        Hq, Hkv, Sk, Dh = 32, 32, 1024, 128
        assert Hq % Hkv == 0, (Hq, Hkv)
        return {
            "x": _w((lambda *s: torch.randn(*s, dtype=torch.bfloat16) * 0.8)(B, Sq, D)),
            "k_cache": _w((lambda *s: torch.randn(*s, dtype=torch.bfloat16) * 0.8)(B, Hkv, Sk, Dh)),
            "v_cache": _w((lambda *s: torch.randn(*s, dtype=torch.bfloat16) * 0.05)(B, Hkv, Sk, Dh)),
            "wq": _w((lambda *s: torch.randn(*s, dtype=torch.bfloat16) * 0.8)(D, Hq * Dh) * (D ** -0.5)),
            "wo": _w((lambda *s: torch.randn(*s, dtype=torch.bfloat16) * 0.05)(Hq * Dh, D) * ((Hq * Dh) ** -0.5)),
        }
    _B_in = _B_setup()

    return {
        "A_x": _A_in["x"],
        "A_k_cache": _A_in["k_cache"],
        "A_v_cache": _A_in["v_cache"],
        "A_wq": _A_in["wq"],
        "A_wo": _A_in["wo"],
        "B_x": _B_in["x"],
        "B_k_cache": _B_in["k_cache"],
        "B_v_cache": _B_in["v_cache"],
        "B_wq": _B_in["wq"],
        "B_wo": _B_in["wo"],
    }

def reference(A_x, A_k_cache, A_v_cache, A_wq, A_wo, B_x, B_k_cache, B_v_cache, B_wq, B_wo):
    def _A_ref(x, k_cache, v_cache, wq, wo):
        B, Sq, D = x.shape
        H, Dh = 32, 128
        q = (lambda x, *d: x.permute(*d))((x @ wq).reshape(B, Sq, H, Dh), 0, 2, 1, 3)
        scores = torch.einsum("bhqd,bhkd->bhqk", q, k_cache) * (Dh ** -0.5)
        p = _softmax(scores, axis=-1)
        o = torch.einsum("bhqk,bhkd->bhqd", p, v_cache)
        return (lambda x, *d: x.permute(*d))(o, 0, 2, 1, 3).reshape(B, Sq, H * Dh) @ wo

    def _B_ref(x, k_cache, v_cache, wq, wo):
        B, Sq, D = x.shape
        Hq, Dh = 32, 128
        Hkv = k_cache.shape[1]
        rep = Hq // Hkv
        q = (lambda x, *d: x.permute(*d))((x @ wq).reshape(B, Sq, Hq, Dh), 0, 2, 1, 3)
        k = (lambda x, n, axis: torch.repeat_interleave(x, n, dim=axis))(k_cache, rep, axis=1)
        v = (lambda x, n, axis: torch.repeat_interleave(x, n, dim=axis))(v_cache, rep, axis=1)
        scores = torch.einsum("bhqd,bhkd->bhqk", q, k) * (Dh ** -0.5)
        p = _softmax(scores, axis=-1)
        o = torch.einsum("bhqk,bhkd->bhqd", p, v)
        return (lambda x, *d: x.permute(*d))(o, 0, 2, 1, 3).reshape(B, Sq, Hq * Dh) @ wo

    a = _A_ref(A_x, A_k_cache, A_v_cache, A_wq, A_wo)
    b = _B_ref(B_x, B_k_cache, B_v_cache, B_wq, B_wo)
    return torch.concatenate([a, b], axis=-1)
```

```python
import sys, math, struct

NAME = "concat_heads__mha_block_cached__gqa_block_cached__near_ridge"
WS_BYTES = 289931264

def f2u(x):
    return struct.unpack("<I", struct.pack("<f", x))[0]

class Em:
    def __init__(self):
        self.L = []
    def __call__(self, s):
        for x in s.split("\n"):
            x = x.strip()
            if x:
                self.L.append(x if x.endswith(":") or x.startswith(".") or x.startswith(";") else "    " + x)
    def text(self):
        return "\n".join(self.L) + "\n"

def vr(b, n=1):
    return f"v{b}" if n == 1 else f"v[{b}:{b+n-1}]"
def ar(b, n=1):
    return f"a{b}" if n == 1 else f"a[{b}:{b+n-1}]"

class Item:
    def __init__(self, text, cost=4, lds=None, tag=None, nlds=1):
        self.text = text; self.cost = cost; self.lds = lds; self.tag = tag; self.nlds = nlds

class Stream:
    def __init__(self, n, budget=24, cyclic=False):
        self.n = n; self.m = [None] * n; self.need = [[] for _ in range(n)]
        self.gap = [[] for _ in range(n)]; self.load = [0] * n
        self.budget = budget; self.cyclic = cyclic
        self.blocked = set()
        self.pre = []
    def put(self, g, it):
        if self.cyclic: g %= self.n
        if g < 0:
            self.pre.append(it); return
        self.gap[g].append(it); self.load[g] += it.cost
    def place(self, lo, hi, it, budget=None):
        budget = budget or self.budget
        best = None
        for g in range(lo, hi + 1):
            gg = g % self.n if self.cyclic else g
            if gg < 0:
                self.pre.append(it); return g
            if gg in self.blocked: continue
            if self.load[gg] + it.cost <= budget:
                self.put(g, it); return g
            if best is None or self.load[gg] < self.load[best % self.n if self.cyclic else best]:
                best = g
        assert best is not None, (lo, hi, it.text)
        self.put(best, it); return best
    def linearize(self, start=0, safe_dist=4):
        waits = {}
        q = []
        done = set()
        order = list(range(start, self.n)) + (list(range(0, start)) if self.cyclic else [])
        if not self.cyclic:
            for it in self.pre:
                if "lgkmcnt(0)" in it.text: q = []
                if it.lds is not None:
                    q += [(it.lds, -100)] * it.nlds
        for t, g in enumerate(order):
            ids = [x[0] for x in q]
            need_pos = [max(i for i, x in enumerate(ids) if x == nd) for nd in self.need[g] if nd in ids]
            if need_pos:
                p = max(need_pos)
                while p + 1 < len(q) and q[p + 1][1] <= t - safe_dist: p += 1
                nleft = len(q) - 1 - p
                assert nleft <= 15
                waits[g] = nleft
                q = q[p + 1:]
            for it in self.gap[g]:
                if "lgkmcnt(0)" in it.text: q = []
                if it.lds is not None:
                    q += [(it.lds, t)] * it.nlds
                    assert len(q) <= 15 or True
        out = []
        for it in self.pre: out.append(it.text)
        for g in range(self.n):
            if g in waits: out.append(f"s_waitcnt lgkmcnt({waits[g]})")
            out.append(self.m[g])
            for it in self.gap[g]: out.append(it.text)
        return out, waits

S_ = lambda t: 16 * t
NM = lambda t: 48 + 16 * t
Q_ = lambda t: 96 + 32 * t
L_ = lambda t: 192 + t
VZ = 196
KA = lambda s: 200 + s
VA = lambda d: 208 + d
DK = lambda i: 212 + i
DV = 216
LANE = 217
L16 = 218
OV = 219
T0 = 220
O_ = lambda t, dt: 64 * t + 16 * dt
KF = lambda s: 192 + 4 * s
VF = lambda j: 224 + 4 * j

SX, SWQ, SK, SK0, SV, SO, SQ = 8, 12, 16, 20, 24, 28, 32
sW, sOFF, sM, sIT, sHEAD, sREDO, sC, sTHR = 36, 37, 38, 39, 40, 41, 42, 43
sT = 60
srd = lambda b: f"s[{b}:{b+3}]"

SLOTQ = 69632
K0AREA = 139264
Q2AREA = 147456
CBAREA = 98304
MLAREA = 147456
WS_O = 0
WS_Q = 40 << 20
WS_DBG = 64 << 20
SCALE = math.log2(math.e) / math.sqrt(128.0)
THR = 2.0 ** 32

MF32 = "v_mfma_f32_32x32x16_bf16"
MF16 = "v_mfma_f32_16x16x32_bf16"

class Opt:
    stamps = False
    nt = "nt"
    force_redo = False

def stamp(e, idx, opt):
    if not opt.stamps: return
    e(f"s_memtime s[96:97]\ns_waitcnt lgkmcnt(0)\nv_writelane_b32 v255, s96, {idx}")

def qacc(H, dtl, tau):
    if tau == 2:
        return ("v", 160 + 16 * H)
    if H == 1:
        idx = dtl * 2 + tau
        if idx < 4: return ("v", 96 + 16 * idx)
        return ("a", 16 * (idx - 4))
    idx = dtl * 2 + tau
    if idx < 6: return ("v", 16 * idx)
    return ("a", 64 + 16 * (idx - 6))
def rs(kb, n):
    k, b = kb
    return f"{k}[{b}:{b+n-1}]"

QA = lambda a: 96 + 4 * a
QB = lambda buf, tau: 128 + 12 * buf + 4 * tau
WQV = lambda i: T0 + i
XV = lambda i: T0 + 4 + i
XV9 = T0 + 8
WA = lambda d: T0 + 10 + d
XA = lambda k: T0 + 14 + k
XA9 = lambda k: T0 + 18 + k
sWQ0, sX0 = 80, 81
sMW, sMX, sMX9 = 82, 83, 84

def qproj_dma_items(stage):
    sb = (stage & 1) * SLOTQ
    its = []
    for half in range(2):
        pre = f"s_add_u32 m0, s{sMW}, {sb + half * 4096}\ns_add_u32 s{sT}, s{sWQ0}, {stage * 64 * 8192 + half * 65536}\n"
        for i in range(4):
            t = f"buffer_load_dwordx4 v{WQV(i)}, {srd(SWQ)}, s{sT} offen offset:{i * 1024} lds"
            its.append(Item((pre if i == 0 else "") + t, cost=16 if i == 0 else 8))
    for half in range(2):
        pre = f"s_add_u32 m0, s{sMX}, {sb + half * 4096}\ns_add_u32 s{sT}, s{sX0}, {stage * 128 + half * 32768}\n"
        for i in range(4):
            t = f"buffer_load_dwordx4 v{XV(i)}, {srd(SX)}, s{sT} offen offset:{i * 1024} lds"
            its.append(Item((pre if i == 0 else "") + t, cost=16 if i == 0 else 8))
    pre = f"s_add_u32 m0, s{sMX9}, {sb}\ns_mov_b32 s{sT}, {stage * 128}\n"
    its.append(Item(pre + f"buffer_load_dwordx4 v{XV9}, {srd(SX)}, s{sT} offen lds", cost=16))
    return its

def kv_group_items(slot_off, opt, soff=None, mbase=None):
    its = []
    nt = opt.nt
    for i in range(4):
        pre = f"s_add_u32 m0, s{sM}, {slot_off}\ns_nop 0\n" if i == 0 else ""
        its.append(Item(pre + f"buffer_load_dwordx4 v{DK(i)}, {srd(SK)}, s{sOFF} offen offset:{i * 1024} {nt} lds", cost=16 if i == 0 else 8))
    for i in range(4):
        pre = f"s_add_u32 m0, s{sM}, {slot_off + 16384}\ns_nop 0\n" if i == 0 else ""
        post = f"\ns_add_u32 s{sOFF}, s{sOFF}, 16384" if i == 3 else ""
        its.append(Item(pre + f"buffer_load_dwordx4 v{DV}, {srd(SV)}, s{sOFF} offen offset:{i * 1024} {nt} lds" + post, cost=16 if i == 0 else (12 if i == 3 else 8)))
    return its

def k0_items(opt):
    raise NotImplementedError

def gen_qproj(e, opt):
    n = 8 * 72
    st = Stream(n, budget=24)
    def aread(stage, ks, a):
        H, dtl = a >> 2, a & 3
        its = []
        for ee in range(2):
            off = (16 * ks + 4 * ee) * 512 + H * 256
            its.append(Item(f"ds_read_b64_tr_b16 {ar(QA(a) + 2 * ee, 2)}, v{WA(dtl)} offset:{off}", lds=("A", stage, ks, a)))
        return its
    def bread(stage, ks, tau):
        buf = ks & 1
        if tau < 2:
            return Item(f"ds_read_b128 {ar(QB(buf, tau), 4)}, v{XA(ks)} offset:{tau * 4096}", lds=("B", stage, ks, tau))
        return Item(f"ds_read_b128 {ar(QB(buf, tau), 4)}, v{XA9(ks)}", lds=("B", stage, ks, tau))
    def toggle(reg, stage):
        if stage & 1: return Item(f"v_subrev_u32 v{reg}, {SLOTQ}, v{reg}")
        return Item(f"v_add_u32 v{reg}, {SLOTQ}, v{reg}")
    lastuse = {}; firstuse = {}
    idx = 0
    for stage in range(8):
        for ks in range(4):
            for a in range(8):
                H, dtl = a >> 2, a & 3
                for tau in ([0, 1, 2] if dtl == 0 else [0, 1]):
                    acc = rs(qacc(H, dtl, tau), 16)
                    c = "0" if (stage == 0 and ks == 0) else acc
                    st.m[idx] = f"{MF32} {acc}, {ar(QA(a), 4)}, {ar(QB(ks & 1, tau), 4)}, {c}"
                    st.need[idx] = [("A", stage, ks, a), ("B", stage, ks, tau)]
                    for k in st.need[idx]:
                        lastuse[k] = idx; firstuse.setdefault(k, idx)
                    idx += 1
    assert idx == n
    BG = lambda s: 72 * s - 14
    for s in range(1, 8):
        st.put(BG(s), Item("s_waitcnt vmcnt(0) lgkmcnt(0)\ns_barrier", cost=24)); st.blocked.add(BG(s))
    for a in range(8):
        for it in aread(0, 0, a): st.put(-1, it)
    for tau in range(3): st.put(-1, bread(0, 0, tau))
    for tau in (0, 2): st.put(-1, toggle(XA(0) if tau == 0 else XA9(0), 0))
    steps = [(s, k) for s in range(8) for k in range(4)]
    for (ps, pk), (s, k) in zip(steps[:-1], steps[1:]):
        base = 72 * ps + 18 * pk
        lo_b = base if k != 0 else BG(s) + 1
        hi_lim = (BG(s + 1) - 4) if k == 3 else 10 ** 9
        g = lo_b
        for tau in range(3):
            g = st.place(max(lo_b, g), min(firstuse[("B", s, k, 0)] - 5, hi_lim), bread(s, k, tau))
            if tau >= 1 and s < 7:
                st.place(g, g + 12, toggle(XA(k) if tau == 1 else XA9(k), s))
        for a in range(8):
            lo = max(lastuse[("A", ps, pk, a)], lo_b)
            hi = min(firstuse[("A", s, k, a)] - 5, hi_lim)
            g = lo
            for it in aread(s, k, a):
                g = st.place(g, hi, it)
            if k == 3 and a >= 4 and s < 7:
                st.place(g, BG(s + 1) - 1, toggle(WA(a & 3), s))
    for s in range(1, 7):
        g = BG(s) + 1
        for it in qproj_dma_items(s + 1):
            g = st.place(g, g + 6, it) + 1
    g = BG(7) + 1
    its = [Item(f"s_add_u32 m0, s{sT+7}, {K0AREA}\ns_nop 0\nbuffer_load_dwordx4 v{T0+22}, {srd(SK0)}, s{sT+7} offen {opt.nt} lds", cost=16),
           Item(f"buffer_load_dwordx4 v{T0+23}, {srd(SK0)}, s{sT+7} offen offset:1024 {opt.nt} lds", cost=8)]
    its += kv_group_items(0, opt) + kv_group_items(32768, opt)
    for it in its:
        g = st.place(g, g + 6, it) + 1
    lines, waits = st.linearize()
    for x in lines: e(x)

def gen_qproj_epilogue(e, opt):
    e("s_nop 15\ns_nop 3")
    e("s_waitcnt lgkmcnt(0)\ns_barrier")
    for it in kv_group_items(65536, opt): e(it.text)
    tmp = T0 + 8
    def conv(src, dst):
        k, b = src
        if k == "a":
            for r in range(16): e(f"v_accvgpr_read_b32 v{tmp + r}, a{b + r}")
            b = tmp
        for r in range(0, 16, 2):
            e(f"v_pk_mul_f32 {vr(b + r, 2)}, {vr(b + r, 2)}, s[{sT+8}:{sT+9}]")
        for r in range(8):
            e(f"v_cvt_pk_bf16_f32 v{dst + r}, v{b + 2 * r}, v{b + 2 * r + 1}")
    e(f"s_mov_b32 s{sT+8}, {f2u(SCALE):#x}\ns_mov_b32 s{sT+9}, {f2u(SCALE):#x}")
    e(f"s_lshl_b32 s{sT}, s{sW}, 11\ns_add_u32 s{sT}, s{sT}, {Q2AREA}")
    e(f"v_add_u32 v{T0+24}, s{sT}, v{L16}")
    for H in range(2):
        src = qacc(H, 0, 2); conv(src, src[1])
        e(f"ds_write_b128 v{T0+24}, {vr(src[1], 4)} offset:{H * 8192}")
        e(f"ds_write_b128 v{T0+24}, {vr(src[1] + 4, 4)} offset:{H * 8192 + 1024}")
    for dtl in range(4):
        for tau in range(2):
            src = qacc(1, dtl, tau)
            dst = src[1] if src[0] == "v" else T0 + 26 if False else None
            if src[0] == "a": dst = tmp
            conv(src, dst)
            so = tau * 8192 + dtl * 2048
            e(f"s_mov_b32 s{sT}, {so}")
            e(f"buffer_store_dwordx4 {vr(dst, 4)}, v{L16}, {srd(SQ)}, s{sT} offen")
            e(f"buffer_store_dwordx4 {vr(dst + 4, 4)}, v{L16}, {srd(SQ)}, s{sT} offen offset:1024")
            e("s_nop 1")
    for dtl in range(4):
        for tau in range(2):
            conv(qacc(0, dtl, tau), Q_(tau) + 8 * dtl)

def q2_read(e, H):
    e(f"s_lshl_b32 s{sT}, s{sW}, 11")
    for d in range(4):
        e(f"s_xor_b32 s{sT+1}, s{sT}, {d * 2048}\ns_add_u32 s{sT+1}, s{sT+1}, {Q2AREA + H * 8192}")
        e(f"v_add_u32 v{T0}, s{sT+1}, v{L16}")
        e(f"ds_read_b128 {vr(Q_(2) + 8 * d, 4)}, v{T0}")
        e(f"ds_read_b128 {vr(Q_(2) + 8 * d + 4, 4)}, v{T0} offset:1024")

D0 = 10
def units_of(w):
    U = []
    for n in range(4):
        U += [(n, 0), (n, 1)]
        if n == w: U.append((n, 2))
    return U

def koff(n):
    return {1: 0, 2: 8192, 3: 32768, 4: 32768 + 8192}[n]
def voff(n):
    return {0: 16384, 1: 16384 + 8192, 2: 32768 + 16384, 3: 32768 + 16384 + 8192}[n]

def qk_mfma(t, s, first_c):
    c = first_c if s == 0 else vr(S_(t), 16)
    return f"{MF32} {vr(S_(t), 16)}, {ar(KF(s), 4)}, {vr(Q_(t) + 4 * s, 4)}, {c}"
def pv_mfma(t, j):
    sp, dt = j >> 2, j & 3
    return f"{MF32} {ar(O_(t, dt), 16)}, {ar(VF(j), 4)}, {vr(S_(t) + 4 * sp, 4)}, {ar(O_(t, dt), 16)}"
def sm_items(t):
    r = []
    s = S_(t)
    for d in range(D0, D0 + 17):
        ee = d - D0
        if ee < 16: r.append((d, Item(f"v_exp_f32 v{s + ee}, v{s + ee}", cost=8, tag=("exp", ee))))
        if ee >= 1: r.append((d, Item(f"v_add_f32 v{L_(t)}, v{L_(t)}, v{s + ee - 1}", tag=("add", ee - 1))))
        if ee >= 2 and ee % 2 == 0:
            i = (ee - 2) // 2
            r.append((d, Item(f"v_cvt_pk_bf16_f32 v{s + i}, v{s + 2 * i}, v{s + 2 * i + 1}", tag=("cvt", i))))
    return r
def kread(n, s):
    return Item(f"ds_read_b128 {ar(KF(s), 4)}, v{KA(s)} offset:{koff(n)}", lds=("K", n % 4, s))
def vread(n, j):
    sp, dt = j >> 2, j & 3
    return [Item(f"ds_read_b64_tr_b16 {ar(VF(j) + 2 * ee, 2)}, v{VA(dt)} offset:{voff(n) + (16 * sp + 8 * ee) * 256}", lds=("V", n, j)) for ee in range(2)]

B0, B1 = 4, 76
def build_loop(w, opt):
    U = units_of(w)
    st = Stream(144, budget=24, cyclic=True)
    wrapped = []
    for u, (n, t) in enumerate(U):
        for s in range(8):
            st.m[16 * u + s] = qk_mfma(t, s, vr(NM(t), 16))
            st.need[16 * u + s] = [("K", n, s)]
        for j in range(8):
            g = (16 * u + 24 + j) % 144
            st.m[g] = pv_mfma(t, j)
            st.need[g] = [("V", n, j)]
        for d, it in sm_items(t):
            st.put(16 * u + d, it)
            if 16 * u + d >= 144: wrapped.append(it)
    for b in (B0, B1):
        st.put(b, Item("s_waitcnt vmcnt(16) lgkmcnt(0)\ns_barrier", cost=8)); st.blocked.add(b)
    L = {n: max(u for u, x in enumerate(U) if x[0] == n) for n in range(4)}
    reqs = []
    for n in range(4):
        for s in range(8):
            lo = 16 * L[n] + s; hi = 16 * (L[n] + 1) + s - 5
            if n + 1 == 2: hi = min(hi, B1 - 4)
            if n + 1 == 3: lo = max(lo, B1 + 1)
            if n + 1 == 4: hi = min(hi, 141)
            reqs.append((lo, hi, [kread(n + 1, s)], ("K", n + 1, s)))
    for n in range(4):
        Lp = L[n - 1] if n > 0 else -1
        for j in range(8):
            lo = 16 * (Lp + 1) + 8 + j; hi = 16 * (Lp + 2) + 8 + j - 5
            if n == 0: lo = max(lo, B0 + 1)
            if n == 1: hi = min(hi, B1 - 4)
            if n == 2: lo = max(lo, B1 + 1)
            if n == 3: hi = min(hi, 141)
            reqs.append((lo, hi, vread(n, j), ("V", n, j)))
    reqs.sort(key=lambda r: (r[1], r[0]))
    pos = {}
    for lo, hi, its, key in reqs:
        assert lo <= hi, (w, lo, hi, key)
        g = lo
        for it in its: g = st.place(g, hi, it)
        pos[key] = g
    for s in range(8):
        st.place(pos[("K", 4, s)], 143, Item(f"v_xor_b32 v{KA(s)}, 0x10000, v{KA(s)}"))
    for d in range(4):
        st.place(pos[("V", 3, 4 + d)], 143, Item(f"v_xor_b32 v{VA(d)}, 0x10000, v{VA(d)}"))
    for (b, e_, slot, tog) in ((B0, B1, 32768, True), (B1, 144 + B0, 0, False)):
        its = kv_group_items(slot, opt)
        if tog:
            its[-1].text += f"\ns_xor_b32 s{sM}, s{sM}, 0x10000"; its[-1].cost += 4
        g = b + 2
        step = 6
        for it in its:
            g2 = st.place(g, min(g + 8, 143 if not tog else e_ - 1), it)
            g = max(g2 + 2, g + step)
    st.put(142, Item(f"s_sub_u32 s{sIT}, s{sIT}, 1"))
    st.put(143, Item(f"s_cmp_lg_u32 s{sIT}, 0"))
    return st, wrapped, U

def rowmax_to_nm(e, t):
    s = S_(t); m = T0; m2 = T0 + 1
    e(f"v_max3_f32 v{m}, v{s}, v{s+1}, v{s+2}")
    for r in range(3, 15, 2):
        e(f"v_max3_f32 v{m}, v{m}, v{s+r}, v{s+r+1}")
    e(f"v_max_f32 v{m}, v{m}, v{s+15}")
    half_reduce(e, m, m2, "v_max_f32")
    for r in range(16):
        e(f"v_sub_f32 v{NM(t)+r}, 0, v{m}")

def half_reduce(e, x, tmp, op):
    e(f"v_mov_b32 v{tmp}, v{x}\ns_nop 1")
    e(f"v_permlane32_swap_b32 v{x}, v{tmp}")
    e(f"s_nop 1\n{op} v{x}, v{x}, v{tmp}")

def gen_attention(e, w, opt):
    st, wrapped, U = build_loop(w, opt)
    tl = U[-1][1]
    lines, waits = st.linearize(start=B0 + 1)
    W = f"W{w}"
    e(f"{W}_head:")
    for t in range(3):
        for s in range(8): e(qk_mfma(t, s, "0"))
    for t in range(3):
        for dt in range(4):
            e(f"{MF32} {ar(O_(t, dt), 16)}, {vr(VZ, 4)}, {vr(VZ, 4)}, 0")
    for t in range(3): rowmax_to_nm(e, t)
    e(f"{W}_enter:")
    wexp = {it.tag[1] for it in wrapped if it.tag[0] == "exp"}
    for r in range(16):
        e(f"v_mov_b32 v{S_(tl) + r}, " + ("0xff800000" if r in wexp else "0"))
    for t in range(3): e(f"v_mov_b32 v{L_(t)}, 0")
    e(f"s_mov_b32 s{sIT}, 8")
    stamp(e, "STAMP_LOOP0", opt) if False else None
    e(".p2align 6" if True else "")
    e(f"{W}_loop:")
    for x in lines: e(x)
    e(f"s_cbranch_scc1 {W}_loop")
    for it in wrapped:
        e(it.text)
        if it.tag[0] == "exp": e("s_nop 0")
    e("s_nop 1")
    for j in range(8): e(pv_mfma(tl, j))
    bad = T0 + 6
    for t in range(3): half_reduce(e, L_(t), T0, "v_add_f32")
    e(f"v_add_f32 v{T0}, v{L_(0)}, v{L_(1)}\nv_add_f32 v{T0+6}, v{T0}, v{L_(2)}")
    e(f"v_mov_b32 v{T0+4}, v{NM(2)}\nv_mov_b32 v{T0+5}, v{L_(2)}\nv_mov_b32 v{T0+7}, 0")
    e(f"v_add_u32 v{T0+1}, {MLAREA}, v{L16}")
    e(f"v_add_u32 v{T0+2}, {CBAREA}, v{L16}")
    e("s_waitcnt lgkmcnt(0)\ns_barrier")
    e(f"ds_write_b128 v{T0+1}, {vr(T0+4, 4)} offset:{w * 1024}")
    e("s_nop 7")
    for dt in range(4):
        if dt == w: continue
        j = (w - dt - 1) % 4
        for k in range(4):
            e(f"ds_write_b128 v{T0+2}, {ar(O_(2, dt) + 4 * k, 4)} offset:{(dt * 3 + j) * 4096 + k * 1024}")
    e("s_waitcnt lgkmcnt(0)\ns_barrier")
    R = T0 + 8
    for ww in range(4):
        e(f"ds_read_b128 {vr(R + 4 * ww, 4)}, v{T0+1} offset:{ww * 1024}")
    e("s_waitcnt lgkmcnt(0)")
    e(f"v_add_f32 v{T0}, v{R+2}, v{R+6}\nv_add_f32 v{T0+3}, v{R+10}, v{R+14}\nv_add_f32 v{T0}, v{T0}, v{T0+3}")
    e(f"v_cmp_nge_f32 vcc, s{sTHR}, v{T0}")
    e(f"s_cbranch_vccnz {W}_redo")
    e(f"{W}_ok:")
    e(f"s_mov_b32 s{sTHR}, {f2u(-1.0 if opt.force_redo else THR):#x}")
    e(f"s_cmp_lg_u32 s{sHEAD}, 0\ns_cbranch_scc1 {W}_noq")
    for tau in range(2):
        for hf in range(2):
            e(f"s_mov_b32 s{sT}, {tau * 8192 + hf * 4096}")
            for k in range(4):
                e(f"buffer_load_dwordx4 {vr(Q_(tau) + 16 * hf + 4 * k, 4)}, v{L16}, {srd(SQ)}, s{sT} offen offset:{k * 1024}")
    q2_read(e, 1)
    e(f"{W}_noq:")
    e(f"v_min3_f32 v{T0}, v{R}, v{R+4}, v{R+8}\nv_min_f32 v{T0}, v{T0}, v{R+12}")
    for ww in range(4):
        e(f"v_sub_f32 v{R+4*ww}, v{T0}, v{R+4*ww}")
    for ww in range(4):
        e(f"v_exp_f32 v{R+4*ww}, v{R+4*ww}")
    e("s_nop 0")
    e(f"v_mul_f32 v{T0}, v{R}, v{R+1}")
    for ww in range(1, 4):
        e(f"v_fmac_f32 v{T0}, v{R+4*ww}, v{R+4*ww+1}")
    e(f"v_rcp_f32 v{T0}, v{T0}\nv_rcp_f32 v{L_(0)}, v{L_(0)}\nv_rcp_f32 v{L_(1)}, v{L_(1)}\ns_nop 0")
    for ww in range(4):
        e(f"v_mul_f32 v{R+4*ww}, v{R+4*ww}, v{T0}")
    for j in range(3):
        for k in range(4):
            e(f"ds_read_b128 {vr(16 * j + 4 * k, 4)}, v{T0+2} offset:{(w * 3 + j) * 4096 + k * 1024}")
    e(f"s_lshl_b32 s{sT+1}, s{sHEAD}, 12\ns_add_u32 s{sT+1}, s{sT+1}, s{sT+10}")
    for t in range(2):
        e(f"s_add_u32 s{sT}, s{sT+1}, {(2 * w + t) * 262144}")
        e(f"v_mov_b32 v{T0+24}, v{L_(t)}\nv_mov_b32 v{T0+25}, v{L_(t)}")
        for dt in range(4):
            b = NM(dt & 1)
            for r in range(16): e(f"v_accvgpr_read_b32 v{b + r}, a{O_(t, dt) + r}")
            for r in range(0, 16, 2): e(f"v_pk_mul_f32 {vr(b + r, 2)}, {vr(b + r, 2)}, {vr(T0+24, 2)}")
            for r in range(8): e(f"v_cvt_pk_bf16_f32 v{b + r}, v{b + 2 * r}, v{b + 2 * r + 1}")
            e(f"buffer_store_dwordx4 {vr(b, 4)}, v{OV}, {srd(SO)}, s{sT} offen offset:{dt * 1024}")
            e(f"buffer_store_dwordx4 {vr(b + 4, 4)}, v{OV}, {srd(SO)}, s{sT} offen offset:{dt * 1024 + 512}")
    b = NM(2)
    for r in range(16): e(f"v_accvgpr_read_b32 v{b + r}, a{O_(2, w) + r}")
    for r in range(16): e(f"v_mul_f32 v{b + r}, v{b + r}, v{R + 4 * w}")
    e("s_waitcnt lgkmcnt(0)")
    for j in range(3):
        ww = (w + 1 + j) % 4
        for r in range(16): e(f"v_fmac_f32 v{b + r}, v{16 * j + r}, v{R + 4 * ww}")
    for r in range(8): e(f"v_cvt_pk_bf16_f32 v{b + r}, v{b + 2 * r}, v{b + 2 * r + 1}")
    e(f"s_add_u32 s{sT}, s{sT+1}, {8 * 262144}")
    e(f"buffer_store_dwordx4 {vr(b, 4)}, v{OV}, {srd(SO)}, s{sT} offen offset:{w * 1024}")
    e(f"buffer_store_dwordx4 {vr(b + 4, 4)}, v{OV}, {srd(SO)}, s{sT} offen offset:{w * 1024 + 512}")
    e(f"s_cmp_lg_u32 s{sHEAD}, 0\ns_cbranch_scc1 K1_end")
    e(f"s_mov_b32 s{sHEAD}, 1\ns_mov_b32 s{sREDO}, 1")
    e("s_waitcnt vmcnt(18)")
    e(f"s_branch {W}_head")
    e(f"{W}_redo:")
    e(f"s_cmp_lg_u32 s{sREDO}, s{sHEAD}\ns_cbranch_scc1 {W}_ok")
    e(f"s_add_u32 s{sREDO}, s{sHEAD}, 1")
    e(f"s_mov_b32 s{sT+12}, {w}")
    e("s_branch K1_maxpass")

def gen_maxpass(e, opt):
    e("K1_maxpass:")
    e("s_waitcnt vmcnt(0) lgkmcnt(0)\ns_barrier")
    MX = lambda t: T0 + 2 + t
    for t in range(3): e(f"v_mov_b32 v{MX(t)}, 0xff800000")
    e(f"s_lshl_b32 s{sT}, s{sHEAD}, 18\ns_lshl_b32 s{sT+1}, s{sW}, 12\ns_add_u32 s{sT}, s{sT}, s{sT+1}")
    e(f"s_mov_b32 s{sT+2}, 16")
    e("K1_mp_loop:")
    e(f"s_mov_b32 m0, s{sT+1}\ns_nop 0")
    for i in range(4):
        e(f"buffer_load_dwordx4 v{DK(i)}, {srd(SK0)}, s{sT} offen offset:{i * 1024} lds")
    e("s_waitcnt vmcnt(0)\ns_barrier")
    for sb in range(2):
        for s in range(8): e(f"ds_read_b128 {ar(KF(s), 4)}, v{KA(s)} offset:{sb * 8192}")
        e("s_waitcnt lgkmcnt(0)")
        for t in range(3):
            for s in range(8): e(qk_mfma(t, s, "0"))
        e("s_nop 15\ns_nop 3")
        for t in range(3):
            for r in range(0, 16, 2):
                e(f"v_max3_f32 v{MX(t)}, v{MX(t)}, v{S_(t)+r}, v{S_(t)+r+1}")
        e("s_nop 7")
    e("s_barrier")
    e(f"s_add_u32 s{sT}, s{sT}, 16384\ns_sub_u32 s{sT+2}, s{sT+2}, 1\ns_cmp_lg_u32 s{sT+2}, 0\ns_cbranch_scc1 K1_mp_loop")
    for t in range(3):
        half_reduce(e, MX(t), T0, "v_max_f32")
        for r in range(16): e(f"v_sub_f32 v{NM(t)+r}, 0, v{MX(t)}")
    prime_addr(e)
    e(f"s_lshl_b32 s{sT}, s{sHEAD}, 18\ns_add_u32 s{sT+3}, s{sT+7}, s{sT}")
    e(f"s_add_u32 m0, s{sT+7}, {K0AREA}\ns_nop 0")
    e(f"buffer_load_dwordx4 v{T0+22}, {srd(SK0)}, s{sT+3} offen lds")
    e(f"buffer_load_dwordx4 v{T0+23}, {srd(SK0)}, s{sT+3} offen offset:1024 lds")
    e(f"s_lshl_b32 s{sM}, s{sW}, 12\ns_add_u32 s{sOFF}, s{sM}, s{sT}")
    for gofs in (0, 32768, 65536):
        for it in kv_group_items(gofs, opt): e(it.text)
    e(f"s_xor_b32 s{sM}, s{sM}, 0x10000")
    e("s_waitcnt vmcnt(0)\ns_barrier")
    k0_read(e)
    for t in range(3):
        for dt in range(4):
            e(f"{MF32} {ar(O_(t, dt), 16)}, {vr(VZ, 4)}, {vr(VZ, 4)}, 0")
    e("s_waitcnt lgkmcnt(0)")
    for w in range(3):
        e(f"s_cmp_eq_u32 s{sT+12}, {w}\ns_cbranch_scc1 W{w}_enter")
    e("s_branch W3_enter")

def prime_addr(e):
    e(f"s_lshl_b32 s{sT+7}, s{sW}, 11")
    e(f"s_and_b32 s{sT+4}, s{sW}, 1\ns_lshl_b32 s{sT+4}, s{sT+4}, 7")
    e(f"v_xor_b32 v{T0+22}, s{sT+4}, v{DK(0)}")
    e(f"v_xor_b32 v{T0+23}, s{sT+4}, v{DK(1)}")

def k0_read(e):
    for s in range(8):
        e(f"v_add_u32 v{T0 + (s & 1)}, {K0AREA}, v{KA(s)}")
        e(f"ds_read_b128 {ar(KF(s), 4)}, v{T0 + (s & 1)}")

def mk_srd(e, d, lo, hi, size):
    e(f"s_mov_b32 s{d}, s{lo}\ns_and_b32 s{d+1}, s{hi}, 0xffff\ns_mov_b32 s{d+2}, {size}\ns_mov_b32 s{d+3}, 0x20000")

def add64(e, lo, off):
    e(f"s_add_u32 s{lo}, s{lo}, {off}\ns_addc_u32 s{lo+1}, s{lo+1}, 0")

def gen_k1(e, opt):
    e(".globl attn_kernel\n.p2align 8\n.type attn_kernel,@function\nattn_kernel:")
    e("s_cmp_ge_u32 s2, 256\ns_cbranch_scc1 K1_exit")
    e("s_load_dwordx8 s[44:51], s[0:1], 0\ns_load_dwordx8 s[52:59], s[0:1], 40\ns_load_dwordx2 s[4:5], s[0:1], 96")
    e(f"v_and_b32 v{LANE}, 63, v0\nv_lshrrev_b32 v1, 6, v0\nv_lshlrev_b32 v{L16}, 4, v{LANE}")
    e(f"v_readfirstlane_b32 s{sW}, v1")
    e(f"s_and_b32 s{sT}, s2, 7\ns_lshl_b32 s{sT}, s{sT}, 1\ns_lshr_b32 s{sT+1}, s2, 7\ns_add_u32 s{sT}, s{sT}, s{sT+1}")
    e(f"s_bfe_u32 s{sT+1}, s2, 0x40003")
    e(f"s_and_b32 s{sT+2}, s{sT}, 7")
    e(f"s_lshl_b32 s{sT+10}, s{sT+1}, 13")
    ln = LANE
    e(f"v_lshrrev_b32 v1, 4, v{ln}\nv_and_b32 v2, 15, v{ln}\nv_xor_b32 v3, v1, v2\nv_lshlrev_b32 v3, 4, v3\nv_lshl_add_u32 v{DK(0)}, v1, 8, v3")
    for i in range(1, 4): e(f"v_xor_b32 v{DK(i)}, {64 * i}, v{DK(0)}")
    e(f"v_lshlrev_b32 v3, 2, v1\nv_xor_b32 v3, v3, v2\nv_lshlrev_b32 v3, 4, v3\nv_lshl_add_u32 v{DV}, v1, 8, v3")
    e(f"v_and_b32 v1, 31, v{ln}\nv_lshrrev_b32 v3, 5, v{ln}\nv_xor_b32 v3, v3, v2\nv_lshlrev_b32 v3, 4, v3\nv_lshl_add_u32 v4, v1, 8, v3")
    e(f"s_lshl_b32 s{sT+4}, s{sW}, 6")
    e(f"v_xor_b32 v4, s{sT+4}, v4")
    for s in range(8): e(f"v_xor_b32 v{KA(s)}, {32 * s}, v4")
    e(f"v_and_b32 v1, 1, v{ln}\nv_lshlrev_b32 v1, 4, v1\nv_and_b32 v3, 2, v{ln}\nv_lshlrev_b32 v3, 2, v3\nv_or_b32 v1, v1, v3")
    e(f"v_and_b32 v3, 16, v{ln}\nv_lshlrev_b32 v3, 1, v3\nv_or_b32 v5, v1, v3")
    e(f"v_bfe_u32 v6, v{ln}, 2, 2\nv_lshrrev_b32 v7, 5, v{ln}")
    e(f"v_lshl_add_u32 v1, v7, 2, v6\nv_lshlrev_b32 v1, 8, v1\nv_lshl_add_u32 v1, v6, 6, v1\nv_or_b32 v1, v1, v5")
    for d in range(4): e(f"v_xor_b32 v{VA(d)}, {64 * d}, v1")
    e(f"v_lshl_add_u32 v1, v7, 3, v6\nv_lshlrev_b32 v1, 9, v1\nv_lshl_add_u32 v1, v6, 6, v1\nv_or_b32 v1, v1, v5\nv_xor_b32 v1, s{sT+4}, v1")
    for d in range(4): e(f"v_xor_b32 v{WA(d)}, {64 * d}, v1")
    e(f"v_and_b32 v1, 31, v{ln}\nv_bfe_u32 v3, v{ln}, 1, 3\nv_xor_b32 v3, v3, v7\nv_lshlrev_b32 v3, 4, v3\nv_lshl_add_u32 v1, v1, 7, v3")
    e(f"s_lshl_b32 s{sT+5}, s{sW}, 13\ns_add_u32 s{sT+5}, s{sT+5}, 32768")
    for k in range(4):
        e(f"v_xor_b32 v3, {32 * k}, v1\nv_add_u32 v{XA(k)}, s{sT+5}, v3\nv_add_u32 v{XA9(k)}, 0x10000, v3")
    e(f"v_and_b32 v1, 16, v{ln}\nv_lshlrev_b32 v1, 13, v1\nv_lshl_add_u32 v1, v7, 8, v1\nv_lshl_add_u32 v{OV}, v2, 4, v1")
    e(f"v_and_b32 v1, 31, v{ln}\nv_lshlrev_b32 v3, 2, v7\nv_xor_b32 v1, v1, v3\nv_lshlrev_b32 v1, 4, v1\nv_lshl_add_u32 v1, v7, 13, v1")
    for i in range(4):
        e(f"v_xor_b32 v3, {(i & 1) * 128}, v1\nv_add_u32 v{WQV(i)}, {i * (16384 - 1024)}, v3")
    e(f"v_lshrrev_b32 v1, 3, v{ln}\nv_and_b32 v3, 7, v{ln}\nv_lshrrev_b32 v4, 4, v{ln}\nv_xor_b32 v3, v3, v4\nv_lshlrev_b32 v3, 4, v3\nv_lshl_add_u32 v1, v1, 10, v3")
    for i in range(4):
        e(f"v_xor_b32 v3, {(i & 1) * 64}, v1\nv_add_u32 v{XV(i)}, {i * (8192 - 1024)}, v3")
    e(f"s_and_b32 s{sT+5}, s{sW}, 1\ns_lshl_b32 s{sT+5}, s{sT+5}, 6\nv_xor_b32 v3, s{sT+5}, v1")
    e(f"s_lshl_b32 s{sT+5}, s{sW}, 13\ns_add_u32 s{sT+5}, s{sT+5}, {256 * 1024}\nv_add_u32 v{XV9}, s{sT+5}, v3")
    e(f"s_lshl_b32 s{sWQ0}, s{sW}, 17")
    e(f"s_lshl_b32 s{sX0}, s{sW}, 16")
    e(f"s_lshl_b32 s{sMW}, s{sW}, 13")
    e(f"s_add_u32 s{sMX}, s{sMW}, 32768")
    e(f"s_lshl_b32 s{sMX9}, s{sW}, 10\ns_add_u32 s{sMX9}, s{sMX9}, 65536")
    e("s_waitcnt lgkmcnt(0)")
    e(f"s_cmp_ge_u32 s{sT}, 8")
    for k in range(4): e(f"s_cselect_b64 s[{44+2*k}:{45+2*k}], s[{52+2*k}:{53+2*k}], s[{44+2*k}:{45+2*k}]")
    e(f"s_mul_i32 s{sT+11}, s{sT+2}, 294912"); add64(e, 44, f"s{sT+11}"); mk_srd(e, SX, 44, 45, 294912)
    e(f"s_lshl_b32 s{sT+11}, s{sT+1}, 9"); add64(e, 50, f"s{sT+11}"); mk_srd(e, SWQ, 50, 51, 4194304 - 15 * 512)
    for stage in range(2):
        for it in qproj_dma_items(stage): e(it.text)
    e(f"s_and_b32 s{sT}, s2, 7\ns_lshl_b32 s{sT}, s{sT}, 1\ns_lshr_b32 s{sT+11}, s2, 7\ns_add_u32 s{sT}, s{sT}, s{sT+11}")
    e(f"s_and_b32 s{sT+11}, s{sT}, 7\ns_lshl_b32 s{sT+11}, s{sT+11}, 23\ns_lshl_b32 s{sT+12}, s{sT+1}, 19\ns_add_u32 s{sT+11}, s{sT+11}, s{sT+12}")
    add64(e, 46, f"s{sT+11}"); mk_srd(e, SK0, 46, 47, 524288)
    add64(e, 46, 8192); mk_srd(e, SK, 46, 47, 524288 - 8192)
    add64(e, 48, f"s{sT+11}"); mk_srd(e, SV, 48, 49, 524288)
    e(f"s_mov_b32 s6, s4\ns_mov_b32 s7, s5")
    e(f"s_mul_i32 s{sT+11}, s{sT}, {18 * 131072}"); add64(e, 6, f"s{sT+11}"); mk_srd(e, SO, 6, 7, 18 * 131072)
    e(f"s_lshl_b32 s{sT+11}, s2, 2\ns_add_u32 s{sT+11}, s{sT+11}, s{sW}\ns_lshl_b32 s{sT+11}, s{sT+11}, 14\ns_add_u32 s{sT+11}, s{sT+11}, {WS_Q}")
    e(f"s_mov_b32 s6, s4\ns_mov_b32 s7, s5"); add64(e, 6, f"s{sT+11}"); mk_srd(e, SQ, 6, 7, 16384)
    e(f"s_lshl_b32 s{sM}, s{sW}, 12\ns_mov_b32 s{sOFF}, s{sM}")
    e(f"s_mov_b32 s{sHEAD}, 0\ns_mov_b32 s{sREDO}, 0\ns_mov_b32 s{sTHR}, {f2u(-1.0 if opt.force_redo else THR):#x}")
    prime_addr(e)
    for r in range(4): e(f"v_mov_b32 v{VZ + r}, 0")
    for r in range(32): e(f"v_accvgpr_write_b32 a{VF(0) + r}, 0")
    e("s_waitcnt vmcnt(17)\ns_barrier")
    gen_qproj(e, opt)
    gen_qproj_epilogue(e, opt)
    e(f"s_xor_b32 s{sM}, s{sM}, 0x10000")
    e("s_waitcnt vmcnt(40) lgkmcnt(0)\ns_barrier")
    q2_read(e, 0)
    k0_read(e)
    e("s_waitcnt lgkmcnt(0)")
    for w in range(1, 4):
        e(f"s_cmp_eq_u32 s{sW}, {w}\ns_cbranch_scc1 W{w}_head")
    for w in range(4):
        gen_attention(e, w, opt)
    gen_maxpass(e, opt)
    e("K1_end:")
    e("K1_exit:\ns_endpgm")

def gen_k2(e, opt):
    ACC = lambda nt, j: 4 * (nt * 9 + j)
    OB = lambda buf, j: 36 * buf + 4 * j + 32
    AF = lambda buf, nt: 176 + 16 * buf + 4 * nt
    WV = lambda i: 8 + i
    TA = lambda nt: 12 + nt
    l16 = 16
    SOO, SWO, SOUT = 8, 12, 16
    sJ = lambda j: 40 + j
    sWOFF, sMB = 50, 51
    e(".globl oproj_kernel\n.p2align 8\n.type oproj_kernel,@function\noproj_kernel:")
    e("s_cmp_ge_u32 s2, 256\ns_cbranch_scc1 K2_exit")
    e("s_load_dwordx2 s[20:21], s[0:1], 32\ns_load_dwordx2 s[22:23], s[0:1], 72\ns_load_dwordx2 s[24:25], s[0:1], 80\ns_load_dwordx2 s[26:27], s[0:1], 96")
    e("v_and_b32 v1, 63, v0\nv_lshrrev_b32 v2, 6, v0")
    e(f"v_lshlrev_b32 v{l16}, 4, v1")
    e("v_readfirstlane_b32 s36, v2")
    e("s_and_b32 s30, s2, 7\ns_lshl_b32 s30, s30, 1\ns_lshr_b32 s31, s2, 7\ns_add_u32 s30, s30, s31")
    e("s_bfe_u32 s31, s2, 0x10006")
    e("s_bfe_u32 s32, s2, 0x30003")
    e("v_lshrrev_b32 v3, 3, v1\nv_and_b32 v4, 7, v1\nv_and_b32 v5, 2, v3\nv_xor_b32 v4, v4, v5\nv_lshlrev_b32 v4, 4, v4\nv_lshl_add_u32 v3, v3, 10, v4")
    for i in range(4):
        e(f"v_xor_b32 v4, {(i & 1) * 64}, v3\nv_add_u32 v{WV(i)}, {i * 7168}, v4")
    e("v_lshrrev_b32 v3, 4, v1\nv_bfe_u32 v4, v1, 2, 2\nv_lshl_add_u32 v5, v3, 3, v4\nv_lshlrev_b32 v5, 7, v5")
    e("v_lshrrev_b32 v4, 1, v4\nv_and_b32 v3, 1, v3\nv_lshl_or_b32 v4, v3, 1, v4\nv_lshl_add_u32 v5, v4, 5, v5")
    e("v_and_b32 v4, 3, v1\nv_lshl_add_u32 v5, v4, 3, v5")
    e(f"s_lshl_b32 s{sMB}, s36, 14")
    e(f"v_add_u32 v5, s{sMB}, v5")
    for nt in range(4): e(f"v_xor_b32 v{TA(nt)}, {32 * nt}, v5")
    e(f"s_mul_i32 s33, s31, {9 * 131072}\ns_lshl_b32 s34, s36, 15\ns_add_u32 s33, s33, s34")
    for j in range(9): e(f"s_add_u32 s{sJ(j)}, s33, {j * 131072}")
    e(f"s_lshl_b32 s{sWOFF}, s36, 20")
    e("s_waitcnt lgkmcnt(0)")
    e("s_cmp_ge_u32 s30, 8\ns_cselect_b64 s[20:21], s[22:23], s[20:21]")
    e("s_lshl_b32 s34, s32, 7"); add64(e, 20, "s34"); mk_srd(e, SWO, 20, 21, 4194304 - 7 * 128)
    e(f"s_mul_i32 s34, s30, {18 * 131072}"); add64(e, 26, "s34"); mk_srd(e, SOO, 26, 27, 18 * 131072)
    mk_srd(e, SOUT, 24, 25, 8 * 288 * 1024 * 2)
    def wo_items(t):
        its = []
        for i in range(4):
            pre = f"s_add_u32 m0, s{sMB}, {(t & 3) * 4096}\ns_add_u32 s52, s{sWOFF}, {t * 32768}\n" if i == 0 else ""
            its.append(Item(pre + f"buffer_load_dwordx4 v{WV(i)}, {srd(SWO)}, s52 offen offset:{i * 1024} lds", cost=12 if i == 0 else 4))
        return its
    def o_items(t):
        its = []
        for j in range(9):
            post = f"\ns_add_u32 s{sJ(j)}, s{sJ(j)}, 4096" if (t & 3) == 3 else ""
            its.append(Item(f"buffer_load_dwordx4 {vr(OB(t & 3, j), 4)}, v{l16}, {srd(SOO)}, s{sJ(j)} offen offset:{(t & 3) * 1024}" + post, cost=8 if post else 4))
        return its
    def a_items(t):
        return [Item(f"ds_read_b64_tr_b16 {vr(AF(t & 1, nt) + 2 * ee, 2)}, v{TA(nt)} offset:{(t & 3) * 4096 + ee * 512}", lds=("A", t, nt))
                for nt in range(4) for ee in range(2)]
    for it in wo_items(0): e(it.text)
    for t in range(-3, 0):
        for it in wo_items(t + 4) + o_items(t + 3): e(it.text)
    e("s_waitcnt vmcnt(39)")
    st = Stream(32 * 36, budget=8)
    for it in a_items(0): st.put(-1, it)
    st.put(-1, Item("s_waitcnt vmcnt(26)"))
    for t in range(32):
        for j in range(9):
            for nt in range(4):
                i = 36 * t + 4 * j + nt
                acc = ar(ACC(nt, j), 4)
                st.m[i] = f"{MF16} {acc}, {vr(AF(t & 1, nt), 4)}, {vr(OB(t & 3, j), 4)}, {'0' if t == 0 else acc}"
                st.need[i] = [("A", t, nt)]
        base = 36 * t
        its = []
        if t + 4 < 32: its += wo_items(t + 4)
        if t + 3 < 32: its += o_items(t + 3)
        g = base + 4
        for it in its:
            g = st.place(g, base + 33, it) + 2
            g = min(g, base + 33)
        if t + 1 < 32:
            g = base + 1
            for it in a_items(t + 1):
                g = st.place(g, base + 24, it) + 1
            def cnt(tt): return (4 if tt + 4 < 32 else 0) + (9 if tt + 3 < 32 else 0)
            st.put(base + 35, Item(f"s_waitcnt vmcnt({cnt(t - 1) + cnt(t)})"))
    lines, _ = st.linearize(safe_dist=8)
    for x in lines: e(x)
    e("v_and_b32 v3, 15, v1\nv_lshrrev_b32 v4, 4, v1\nv_xor_b32 v4, v4, v3\nv_lshlrev_b32 v4, 4, v4\nv_lshl_add_u32 v4, v3, 8, v4")
    e("s_mul_i32 s34, s36, 36864\nv_add_u32 v4, s34, v4")
    for nt in range(4): e(f"v_xor_b32 v{20 + nt}, {64 * nt}, v4")
    e("s_nop 7\ns_barrier")
    for j in range(9):
        for nt in range(4):
            e(f"ds_write_b128 v{20 + nt}, {ar(ACC(nt, j), 4)} offset:{j * 4096}")
    e("v_and_b32 v3, 7, v0\nv_lshrrev_b32 v4, 3, v0\nv_and_b32 v5, 15, v4\nv_lshlrev_b32 v6, 1, v3\nv_xor_b32 v6, v6, v5\nv_lshlrev_b32 v6, 4, v6\nv_lshl_add_u32 v6, v4, 8, v6")
    e("v_xor_b32 v7, 16, v6")
    for ww in range(4):
        e(f"v_add_u32 v{208 + 2 * ww}, {36864 * ww}, v6\nv_add_u32 v{209 + 2 * ww}, {36864 * ww}, v7")
    e("v_lshlrev_b32 v26, 11, v4\nv_lshl_add_u32 v26, v3, 4, v26")
    e(f"s_and_b32 s34, s30, 7\ns_mul_i32 s34, s34, {288 * 2048}\ns_mul_i32 s35, s31, {144 * 2048}\ns_add_u32 s34, s34, s35")
    e("s_lshr_b32 s35, s30, 3\ns_lshl_b32 s35, s35, 10\ns_add_u32 s34, s34, s35\ns_lshl_b32 s35, s32, 7\ns_add_u32 s34, s34, s35")
    e("s_waitcnt lgkmcnt(0)\ns_barrier")
    for it in range(5):
        if it == 4:
            e("s_cmp_ge_u32 s36, 2\ns_cbranch_scc1 K2_exit")
        b = 32 + 32 * (it & 1)
        for ww in range(4):
            for hb in range(2):
                e(f"ds_read_b128 {vr(b + 8 * ww + 4 * hb, 4)}, v{208 + 2 * ww + hb} offset:{it * 8192}")
        e("s_waitcnt lgkmcnt(0)")
        for r in range(0, 8, 2):
            e(f"v_pk_add_f32 {vr(b + r, 2)}, {vr(b + r, 2)}, {vr(b + 8 + r, 2)}")
            e(f"v_pk_add_f32 {vr(b + 16 + r, 2)}, {vr(b + 16 + r, 2)}, {vr(b + 24 + r, 2)}")
        for r in range(0, 8, 2):
            e(f"v_pk_add_f32 {vr(b + r, 2)}, {vr(b + r, 2)}, {vr(b + 16 + r, 2)}")
        for r in range(4):
            e(f"v_cvt_pk_bf16_f32 v{b + r}, v{b + 2 * r}, v{b + 2 * r + 1}")
        e(f"buffer_store_dwordx4 {vr(b, 4)}, v26, {srd(SOUT)}, s34 offen")
        e("s_add_u32 s34, s34, 65536")
    e("K2_exit:\ns_endpgm")

def kd(e, name, vg, acc):
    e(f".p2align 6\n.amdhsa_kernel {name}")
    for x in (f".amdhsa_next_free_vgpr {vg}", ".amdhsa_next_free_sgpr 102", f".amdhsa_accum_offset {acc}",
              ".amdhsa_group_segment_fixed_size 0", ".amdhsa_kernarg_size 104", ".amdhsa_user_sgpr_count 2",
              ".amdhsa_user_sgpr_kernarg_segment_ptr 1", ".amdhsa_system_sgpr_workgroup_id_x 1",
              ".amdhsa_float_denorm_mode_32 3"):
        e.L.append("  " + x)
    e(".end_amdhsa_kernel")

def generate(opt):
    e = Em()
    hdr = open(f"cdna_kernels/{NAME}.s.ref").read().split("; Override launch")[0]
    e.L += hdr.rstrip().split("\n")
    e("; @launch kernel=attn_kernel grid=(256,1,1) block=(256,1,1) lds=163840")
    e("; @launch kernel=oproj_kernel grid=(256,1,1) block=(256,1,1) lds=147456")
    e('.amdgcn_target "amdgcn-amd-amdhsa--gfx950"\n.text')
    gen_k1(e, opt)
    gen_k2(e, opt)
    e('.section .rodata,"a"')
    kd(e, "attn_kernel", 512, 256)
    kd(e, "oproj_kernel", 512, 256)
    return e.text()

if __name__ == "__main__":
    opt = Opt()
    out = f"cdna_kernels/{NAME}.s"
    for a in sys.argv[1:]:
        if a.startswith("out="): out = a[4:]
        elif "=" in a:
            k, v = a.split("=", 1)
            setattr(opt, k, int(v) if v.lstrip("-").isdigit() else v)
    open(out, "w").write(generate(opt))
    print("wrote", out)
```

```python
import sys, math, struct

NAME = "concat_heads__mha_block_cached__gqa_block_cached__near_ridge"
WS_BYTES = 289931264

def f2u(x):
    return struct.unpack("<I", struct.pack("<f", x))[0]

class Em:
    def __init__(self):
        self.L = []
    def __call__(self, s):
        for x in s.split("\n"):
            x = x.strip()
            if x:
                self.L.append(x if x.endswith(":") or x.startswith(".") or x.startswith(";") else "    " + x)
    def text(self):
        return "\n".join(self.L) + "\n"

def vr(b, n=1):
    return f"v{b}" if n == 1 else f"v[{b}:{b+n-1}]"
def ar(b, n=1):
    return f"a{b}" if n == 1 else f"a[{b}:{b+n-1}]"

class Item:
    def __init__(self, text, cost=4, lds=None, tag=None, nlds=1):
        self.text = text; self.cost = cost; self.lds = lds; self.tag = tag; self.nlds = nlds

class Stream:
    def __init__(self, n, budget=24, cyclic=False):
        self.n = n; self.m = [None] * n; self.need = [[] for _ in range(n)]
        self.gap = [[] for _ in range(n)]; self.load = [0] * n
        self.budget = budget; self.cyclic = cyclic
        self.blocked = set()
        self.pre = []
    def put(self, g, it):
        if self.cyclic: g %= self.n
        if g < 0:
            self.pre.append(it); return
        self.gap[g].append(it); self.load[g] += it.cost
    def place(self, lo, hi, it, budget=None):
        budget = budget or self.budget
        best = None
        for g in range(lo, hi + 1):
            gg = g % self.n if self.cyclic else g
            if gg < 0:
                self.pre.append(it); return g
            if gg in self.blocked: continue
            if self.load[gg] + it.cost <= budget:
                self.put(g, it); return g
            if best is None or self.load[gg] < self.load[best % self.n if self.cyclic else best]:
                best = g
        assert best is not None, (lo, hi, it.text)
        self.put(best, it); return best
    def linearize(self, start=0, safe_dist=4):
        waits = {}
        q = []
        done = set()
        order = list(range(start, self.n)) + (list(range(0, start)) if self.cyclic else [])
        if not self.cyclic:
            for it in self.pre:
                if "lgkmcnt(0)" in it.text: q = []
                if it.lds is not None:
                    q += [(it.lds, -100)] * it.nlds
        for t, g in enumerate(order):
            ids = [x[0] for x in q]
            need_pos = [max(i for i, x in enumerate(ids) if x == nd) for nd in self.need[g] if nd in ids]
            if need_pos:
                p = max(need_pos)
                while p + 1 < len(q) and q[p + 1][1] <= t - safe_dist: p += 1
                nleft = len(q) - 1 - p
                assert nleft <= 15
                waits[g] = nleft
                q = q[p + 1:]
            for it in self.gap[g]:
                if "lgkmcnt(0)" in it.text: q = []
                if it.lds is not None:
                    q += [(it.lds, t)] * it.nlds
                    assert len(q) <= 15 or True
        out = []
        for it in self.pre: out.append(it.text)
        for g in range(self.n):
            if g in waits: out.append(f"s_waitcnt lgkmcnt({waits[g]})")
            out.append(self.m[g])
            for it in self.gap[g]: out.append(it.text)
        return out, waits

S_ = lambda t: 16 * t
NM = lambda t: 48 + 16 * t
Q_ = lambda t: 96 + 32 * t
L_ = lambda t: 192 + t
VZ = 196
KA = lambda s: 200 + s
VA = lambda d: 208 + d
DK = lambda i: 212 + i
DV = 216
LANE = 217
L16 = 218
OV = 219
T0 = 220
O_ = lambda t, dt: 64 * t + 16 * dt
KF = lambda s: 192 + 4 * s
VF = lambda j: 224 + 4 * j

SX, SWQ, SK, SK0, SV, SO, SQ = 8, 12, 16, 20, 24, 28, 32
sW, sOFF, sM, sIT, sHEAD, sREDO, sC, sTHR = 36, 37, 38, 39, 40, 41, 42, 43
sT = 60
sOFFK, sROT, sTK = 85, 86, 87
sX9, sP, sHP = 79, 78, 77
sTO, sEV = 76, 75
VD = 252
srd = lambda b: f"s[{b}:{b+3}]"

SLOTQ = 69632
K0AREA = 139264
Q2AREA = 147456
CBAREA = 98304
MLAREA = 147456
WS_O = 0
WS_Q = 40 << 20
WS_DBG = 64 << 20
SCALE = math.log2(math.e) / math.sqrt(128.0)
THR = 2.0 ** 32

MF32 = "v_mfma_f32_32x32x16_bf16"
MF16 = "v_mfma_f32_16x16x32_bf16"

class Opt:
    stamps = False
    nt = "nt"
    force_redo = False
    rot = 1
    qtouch = 2
    g2late = 1
    krot = 7
    map48 = 1
    qrot = 0
    qpace = 26
    kvpace = 50
    touch_wo = 1
    f_wq = "nt"; f_x = ""; f_ost = ""; f_old = ""; f_wo = ""; f_out = ""; f_qst = ""; f_qld = ""

def stamp(e, idx, opt):
    if not opt.stamps: return
    e(f"s_memtime s[96:97]\ns_memrealtime s[98:99]\ns_waitcnt lgkmcnt(0)")
    if isinstance(idx, tuple):
        e(f"s_mul_i32 s100, s{idx[1]}, {idx[2]}\ns_add_u32 s100, s100, {idx[0]}\ns_mov_b32 s101, m0\ns_mov_b32 m0, s100")
        e("v_writelane_b32 v255, s96, m0\nv_writelane_b32 v254, s98, m0\ns_mov_b32 m0, s101")
    else:
        e(f"v_writelane_b32 v255, s96, {idx}\nv_writelane_b32 v254, s98, {idx}")

def stamp_flush(e, opt, kern, sw, wslo):
    if not opt.stamps: return
    e(f"s_lshl_b32 s92, s2, 2\ns_add_u32 s92, s92, s{sw}\ns_lshl_b32 s92, s92, 9\ns_add_u32 s92, s92, {WS_DBG + kern * (1 << 20)}")
    e(f"s_load_dwordx2 s[94:95], s[0:1], 96\ns_waitcnt lgkmcnt(0)")
    e(f"s_mov_b32 s88, s94\ns_and_b32 s89, s95, 0xffff\ns_mov_b32 s90, {WS_BYTES}\ns_mov_b32 s91, 0x20000")
    e("v_mbcnt_lo_u32_b32 v253, -1, 0\nv_mbcnt_hi_u32_b32 v253, -1, v253\nv_lshlrev_b32 v253, 3, v253")
    e("buffer_store_dwordx2 v[254:255], v253, s[88:91], s92 offen")

def qacc(H, dtl, tau):
    if tau == 2:
        return ("v", 160 + 16 * H)
    if H == 1:
        idx = dtl * 2 + tau
        if idx < 4: return ("v", 96 + 16 * idx)
        return ("a", 16 * (idx - 4))
    idx = dtl * 2 + tau
    if idx < 6: return ("v", 16 * idx)
    return ("a", 64 + 16 * (idx - 6))
def rs(kb, n):
    k, b = kb
    return f"{k}[{b}:{b+n-1}]"

QA = lambda a: 96 + 4 * a
QB = lambda buf, tau: 128 + 12 * buf + 4 * tau
WQV = lambda i: T0 + i
XV = lambda i: T0 + 4 + i
XV9 = T0 + 8
WA = lambda d: T0 + 10 + d
XA = lambda k: T0 + 14 + k
XA9 = lambda k: T0 + 18 + k
sWQ0, sX0 = 80, 81
sMW, sMX, sMX9 = 82, 83, 84

def qproj_dma_items(stage, opt):
    sb = (stage & 1) * SLOTQ
    its = []
    for half in range(2):
        pre = f"s_add_u32 m0, s{sMW}, {sb + half * 4096}\ns_xor_b32 s{sT}, s{sWQ0}, {stage * 64 * 8192 + half * 65536}\n"
        for i in range(4):
            t = f"buffer_load_dwordx4 v{WQV(i)}, {srd(SWQ)}, s{sT} offen offset:{i * 1024} {opt.f_wq} lds"
            its.append(Item((pre if i == 0 else "") + t, cost=16 if i == 0 else 8))
    for half in range(2):
        pre = f"s_add_u32 m0, s{sMX}, {sb + half * 4096}\ns_xor_b32 s{sT}, s{sX0}, {stage * 128 + half * 32768}\n"
        for i in range(4):
            t = f"buffer_load_dwordx4 v{XV(i)}, {srd(SX)}, s{sT} offen offset:{i * 1024} {opt.f_x} lds"
            its.append(Item((pre if i == 0 else "") + t, cost=16 if i == 0 else 8))
    pre = f"s_add_u32 m0, s{sMX9}, {sb}\ns_xor_b32 s{sT}, s{sX9}, {stage * 128}\n"
    its.append(Item(pre + f"buffer_load_dwordx4 v{XV9}, {srd(SX)}, s{sT} offen {opt.f_x} lds", cost=16))
    return its

def kv_group_items(slot_off, opt, soff=None, mbase=None):
    its = []
    nt = opt.nt
    for i in range(4):
        pre = f"s_add_u32 m0, s{sM}, {slot_off}\ns_xor_b32 s{sTK}, s{sOFFK}, s{sROT}\n" if i == 0 else ""
        post = f"\ns_add_u32 s{sOFFK}, s{sOFFK}, 16384" if i == 3 else ""
        its.append(Item(pre + f"buffer_load_dwordx4 v{DK(i)}, {srd(SK0)}, s{sTK} offen offset:{i * 1024} {nt} lds" + post, cost=16 if i == 0 else (12 if i == 3 else 8)))
    for i in range(4):
        pre = f"s_add_u32 m0, s{sM}, {slot_off + 16384}\ns_xor_b32 s{sTK}, s{sOFF}, s{sROT}\n" if i == 0 else ""
        post = f"\ns_add_u32 s{sOFF}, s{sOFF}, 16384" if i == 3 else ""
        its.append(Item(pre + f"buffer_load_dwordx4 v{DV}, {srd(SV)}, s{sTK} offen offset:{i * 1024} {nt} lds" + post, cost=16 if i == 0 else (12 if i == 3 else 8)))
    return its

def k0_items(opt):
    raise NotImplementedError

def gen_qproj(e, opt):
    n = 8 * 72
    st = Stream(n, budget=24)
    def aread(stage, ks, a):
        H, dtl = a >> 2, a & 3
        its = []
        for ee in range(2):
            off = (16 * ks + 4 * ee) * 512 + H * 256
            its.append(Item(f"ds_read_b64_tr_b16 {ar(QA(a) + 2 * ee, 2)}, v{WA(dtl)} offset:{off}", lds=("A", stage, ks, a)))
        return its
    def bread(stage, ks, tau):
        buf = ks & 1
        if tau < 2:
            return Item(f"ds_read_b128 {ar(QB(buf, tau), 4)}, v{XA(ks)} offset:{tau * 4096}", lds=("B", stage, ks, tau))
        return Item(f"ds_read_b128 {ar(QB(buf, tau), 4)}, v{XA9(ks)}", lds=("B", stage, ks, tau))
    def toggle(reg, stage):
        if stage & 1: return Item(f"v_subrev_u32 v{reg}, {SLOTQ}, v{reg}")
        return Item(f"v_add_u32 v{reg}, {SLOTQ}, v{reg}")
    lastuse = {}; firstuse = {}
    idx = 0
    for stage in range(8):
        for ks in range(4):
            for a in range(8):
                H, dtl = a >> 2, a & 3
                for tau in ([0, 1, 2] if dtl == 0 else [0, 1]):
                    acc = rs(qacc(H, dtl, tau), 16)
                    c = "0" if (stage == 0 and ks == 0) else acc
                    st.m[idx] = f"{MF32} {acc}, {ar(QA(a), 4)}, {ar(QB(ks & 1, tau), 4)}, {c}"
                    st.need[idx] = [("A", stage, ks, a), ("B", stage, ks, tau)]
                    for k in st.need[idx]:
                        lastuse[k] = idx; firstuse.setdefault(k, idx)
                    idx += 1
    assert idx == n
    BG = lambda s: 72 * s - 14
    for s in range(1, 8):
        txt = "s_waitcnt vmcnt(0) lgkmcnt(0)\ns_barrier"
        if opt.stamps == 2:
            e1 = Em(); stamp(e1, 16 + 2 * s, opt); e2 = Em(); stamp(e2, 17 + 2 * s, opt)
            txt = e1.text() + txt + "\n" + e2.text()
        st.put(BG(s), Item(txt, cost=24)); st.blocked.add(BG(s))
    for a in range(8):
        for it in aread(0, 0, a): st.put(-1, it)
    for tau in range(3): st.put(-1, bread(0, 0, tau))
    for tau in (0, 2): st.put(-1, toggle(XA(0) if tau == 0 else XA9(0), 0))
    steps = [(s, k) for s in range(8) for k in range(4)]
    for (ps, pk), (s, k) in zip(steps[:-1], steps[1:]):
        base = 72 * ps + 18 * pk
        lo_b = base if k != 0 else BG(s) + 1
        hi_lim = (BG(s + 1) - 4) if k == 3 else 10 ** 9
        g = lo_b
        for tau in range(3):
            g = st.place(max(lo_b, g), min(firstuse[("B", s, k, 0)] - 5, hi_lim), bread(s, k, tau))
            if tau >= 1 and s < 7:
                st.place(g, g + 12, toggle(XA(k) if tau == 1 else XA9(k), s))
        for a in range(8):
            lo = max(lastuse[("A", ps, pk, a)], lo_b)
            hi = min(firstuse[("A", s, k, a)] - 5, hi_lim)
            g = lo
            for it in aread(s, k, a):
                g = st.place(g, hi, it)
            if k == 3 and a >= 4 and s < 7:
                st.place(g, BG(s + 1) - 1, toggle(WA(a & 3), s))
    k0its = [Item(f"s_add_u32 m0, s{sT+7}, {K0AREA}\ns_add_u32 s{sTK}, s{sT+7}, s{sROT}\nbuffer_load_dwordx4 v{T0+22}, {srd(SK0)}, s{sTK} offen {opt.nt} lds", cost=16),
             Item(f"buffer_load_dwordx4 v{T0+23}, {srd(SK0)}, s{sTK} offen offset:1024 {opt.nt} lds", cost=8)]
    for s in range(1, 7):
        its = qproj_dma_items(s + 1, opt)
        if s == 4: its = k0its + its
        last = BG(s)
        for i, it in enumerate(its):
            g = max(last + 1, BG(s) + 1 + i * opt.qpace // 10)
            last = st.place(g, g + 3, it)
    its = kv_group_items(0, opt) + kv_group_items(32768, opt)
    last = BG(7)
    for i, it in enumerate(its):
        g = max(last + 1, BG(7) + 1 + i * opt.kvpace // 10)
        last = st.place(g, min(g + 3, n - 1), it)
    lines, waits = st.linearize()
    for x in lines: e(x)

def gen_qproj_epilogue(e, opt):
    e("s_nop 15\ns_nop 3")
    e("s_waitcnt lgkmcnt(0)\ns_barrier")
    tmp = T0 + 8
    def conv(src, dst):
        k, b = src
        if k == "a":
            for r in range(16): e(f"v_accvgpr_read_b32 v{tmp + r}, a{b + r}")
            b = tmp
        for r in range(0, 16, 2):
            e(f"v_pk_mul_f32 {vr(b + r, 2)}, {vr(b + r, 2)}, s[{sT+8}:{sT+9}]")
        for r in range(8):
            e(f"v_cvt_pk_bf16_f32 v{dst + r}, v{b + 2 * r}, v{b + 2 * r + 1}")
    e(f"s_mov_b32 s{sT+8}, {f2u(SCALE):#x}\ns_mov_b32 s{sT+9}, {f2u(SCALE):#x}")
    e(f"s_lshl_b32 s{sT}, s{sW}, 11\ns_add_u32 s{sT}, s{sT}, {Q2AREA}")
    e(f"v_add_u32 v{T0+24}, s{sT}, v{L16}")
    for H in range(2):
        src = qacc(H, 0, 2); conv(src, src[1])
        e(f"ds_write_b128 v{T0+24}, {vr(src[1], 4)} offset:{H * 8192}")
        e(f"ds_write_b128 v{T0+24}, {vr(src[1] + 4, 4)} offset:{H * 8192 + 1024}")
    for dtl in range(4):
        for tau in range(2):
            src = qacc(1, dtl, tau)
            dst = src[1] if src[0] == "v" else T0 + 26 if False else None
            if src[0] == "a": dst = tmp
            conv(src, dst)
            so = tau * 8192 + dtl * 2048
            e(f"s_mov_b32 s{sT}, {so}")
            e(f"buffer_store_dwordx4 {vr(dst, 4)}, v{L16}, {srd(SQ)}, s{sT} offen {opt.f_qst}")
            e(f"buffer_store_dwordx4 {vr(dst + 4, 4)}, v{L16}, {srd(SQ)}, s{sT} offen offset:1024 {opt.f_qst}")
            e("s_nop 1")
    g2 = kv_group_items(65536, opt)
    for dtl in range(4):
        for tau in range(2):
            conv(qacc(0, dtl, tau), Q_(tau) + 8 * dtl)
            if not opt.g2late: e(g2[2 * dtl + tau].text)

def q2_read(e, H):
    e(f"s_lshl_b32 s{sT}, s{sW}, 11")
    for d in range(4):
        e(f"s_xor_b32 s{sT+1}, s{sT}, {d * 2048}\ns_add_u32 s{sT+1}, s{sT+1}, {Q2AREA + H * 8192}")
        e(f"v_add_u32 v{T0}, s{sT+1}, v{L16}")
        e(f"ds_read_b128 {vr(Q_(2) + 8 * d, 4)}, v{T0}")
        e(f"ds_read_b128 {vr(Q_(2) + 8 * d + 4, 4)}, v{T0} offset:1024")

D0 = 10
def units_of(w):
    U = []
    for n in range(4):
        U += [(n, 0), (n, 1)]
        if n == w: U.append((n, 2))
    return U

def koff(n):
    return {1: 0, 2: 8192, 3: 32768, 4: 32768 + 8192}[n]
def voff(n):
    return {0: 16384, 1: 16384 + 8192, 2: 32768 + 16384, 3: 32768 + 16384 + 8192}[n]

def qk_mfma(t, s, first_c):
    c = first_c if s == 0 else vr(S_(t), 16)
    return f"{MF32} {vr(S_(t), 16)}, {ar(KF(s), 4)}, {vr(Q_(t) + 4 * s, 4)}, {c}"
def pv_mfma(t, j):
    sp, dt = j >> 2, j & 3
    return f"{MF32} {ar(O_(t, dt), 16)}, {ar(VF(j), 4)}, {vr(S_(t) + 4 * sp, 4)}, {ar(O_(t, dt), 16)}"
def sm_items(t):
    r = []
    s = S_(t)
    for d in range(D0, D0 + 17):
        ee = d - D0
        if ee < 16: r.append((d, Item(f"v_exp_f32 v{s + ee}, v{s + ee}", cost=8, tag=("exp", ee))))
        if ee >= 1: r.append((d, Item(f"v_add_f32 v{L_(t)}, v{L_(t)}, v{s + ee - 1}", tag=("add", ee - 1))))
        if ee >= 2 and ee % 2 == 0:
            i = (ee - 2) // 2
            r.append((d, Item(f"v_cvt_pk_bf16_f32 v{s + i}, v{s + 2 * i}, v{s + 2 * i + 1}", tag=("cvt", i))))
    return r
def kread(n, s):
    return Item(f"ds_read_b128 {ar(KF(s), 4)}, v{KA(s)} offset:{koff(n)}", lds=("K", n % 4, s))
def vread(n, j):
    sp, dt = j >> 2, j & 3
    return [Item(f"ds_read_b64_tr_b16 {ar(VF(j) + 2 * ee, 2)}, v{VA(dt)} offset:{voff(n) + (16 * sp + 8 * ee) * 256}", lds=("V", n, j)) for ee in range(2)]

B0, B1 = 4, 76
def build_loop(w, opt):
    U = units_of(w)
    st = Stream(144, budget=24, cyclic=True)
    wrapped = []
    for u, (n, t) in enumerate(U):
        for s in range(8):
            st.m[16 * u + s] = qk_mfma(t, s, vr(NM(t), 16))
            st.need[16 * u + s] = [("K", n, s)]
        for j in range(8):
            g = (16 * u + 24 + j) % 144
            st.m[g] = pv_mfma(t, j)
            st.need[g] = [("V", n, j)]
        for d, it in sm_items(t):
            st.put(16 * u + d, it)
            if 16 * u + d >= 144: wrapped.append(it)
    for bi, b in enumerate((B0, B1)):
        txt = "s_waitcnt vmcnt(17) lgkmcnt(0)\ns_barrier"
        if opt.stamps == 4:
            def cst(k):
                e1 = Em()
                lab = f"W{w}_st{bi}_{k}"
                e1(f"s_lshl_b32 s93, s{sHEAD}, 3\ns_sub_u32 s93, s93, s{sIT}\ns_add_u32 s93, s93, 8\ns_cmp_ge_u32 s93, 6\ns_cbranch_scc1 {lab}")
                stamp(e1, (16 + 3 * bi + k, 93, 6), opt)
                e1(f"{lab}:")
                return e1.text()
            txt = cst(0) + "s_waitcnt vmcnt(17) lgkmcnt(0)\n" + cst(1) + "s_barrier\n" + cst(2)
        st.put(b, Item(txt, cost=8)); st.blocked.add(b)
    L = {n: max(u for u, x in enumerate(U) if x[0] == n) for n in range(4)}
    reqs = []
    for n in range(4):
        for s in range(8):
            lo = 16 * L[n] + s; hi = 16 * (L[n] + 1) + s - 5
            if n + 1 == 2: hi = min(hi, B1 - 4)
            if n + 1 == 3: lo = max(lo, B1 + 1)
            if n + 1 == 4: hi = min(hi, 141)
            reqs.append((lo, hi, [kread(n + 1, s)], ("K", n + 1, s)))
    for n in range(4):
        Lp = L[n - 1] if n > 0 else -1
        for j in range(8):
            lo = 16 * (Lp + 1) + 8 + j; hi = 16 * (Lp + 2) + 8 + j - 5
            if n == 0: lo = max(lo, B0 + 1)
            if n == 1: hi = min(hi, B1 - 4)
            if n == 2: lo = max(lo, B1 + 1)
            if n == 3: hi = min(hi, 141)
            reqs.append((lo, hi, vread(n, j), ("V", n, j)))
    reqs.sort(key=lambda r: (r[1], r[0]))
    pos = {}
    for lo, hi, its, key in reqs:
        assert lo <= hi, (w, lo, hi, key)
        g = lo
        for it in its: g = st.place(g, hi, it)
        pos[key] = g
    for s in range(8):
        st.place(pos[("K", 4, s)], 143, Item(f"v_xor_b32 v{KA(s)}, 0x10000, v{KA(s)}"))
    for d in range(4):
        st.place(pos[("V", 3, 4 + d)], 143, Item(f"v_xor_b32 v{VA(d)}, 0x10000, v{VA(d)}"))
    for (b, e_, slot, tog) in ((B0, B1, 32768, True), (B1, 144 + B0, 0, False)):
        its = kv_group_items(slot, opt)
        if tog:
            its.insert(0, Item(f"buffer_load_dword v{VD}, v{L16}, {srd(SK)}, s{sTO} offen\ns_add_u32 s{sTO}, s{sTO}, 1024", cost=12))
            its[-1].text += f"\ns_xor_b32 s{sM}, s{sM}, 0x10000"; its[-1].cost += 4
        g = b + 2
        step = 6
        for it in its:
            g2 = st.place(g, min(g + 8, 143 if not tog else e_ - 1), it)
            g = max(g2 + 2, g + step)
    st.place(1, 3, Item(f"s_cmp_eq_u32 s{sIT}, s{sEV}\ns_cbranch_scc1 W{w}_hook\nW{w}_hookret:", cost=8))
    st.put(142, Item(f"s_sub_u32 s{sIT}, s{sIT}, 1"))
    st.put(143, Item(f"s_cmp_lg_u32 s{sIT}, 0"))
    return st, wrapped, U

def rowmax_to_nm(e, t):
    s = S_(t); m = T0; m2 = T0 + 1
    e(f"v_max3_f32 v{m}, v{s}, v{s+1}, v{s+2}")
    for r in range(3, 15, 2):
        e(f"v_max3_f32 v{m}, v{m}, v{s+r}, v{s+r+1}")
    e(f"v_max_f32 v{m}, v{m}, v{s+15}")
    half_reduce(e, m, m2, "v_max_f32")
    for r in range(16):
        e(f"v_sub_f32 v{NM(t)+r}, 0, v{m}")

def half_reduce(e, x, tmp, op):
    e(f"v_mov_b32 v{tmp}, v{x}\ns_nop 1")
    e(f"v_permlane32_swap_b32 v{x}, v{tmp}")
    e(f"s_nop 1\n{op} v{x}, v{x}, v{tmp}")

def gen_attention(e, w, opt):
    st, wrapped, U = build_loop(w, opt)
    tl = U[-1][1]
    lines, waits = st.linearize(start=B0 + 1)
    W = f"W{w}"
    e(f"{W}_head:")
    stamp(e, (5, sHEAD, 5), opt)
    for t in range(3):
        for s in range(8): e(qk_mfma(t, s, "0"))
    for t in range(3):
        for dt in range(4):
            e(f"{MF32} {ar(O_(t, dt), 16)}, {vr(VZ, 4)}, {vr(VZ, 4)}, 0")
    for t in range(3): rowmax_to_nm(e, t)
    if opt.g2late:
        e(f"s_cmp_lg_u32 s{sHEAD}, 0\ns_cbranch_scc1 {W}_enter")
        for it in kv_group_items(65536, opt): e(it.text)
        e(f"s_xor_b32 s{sM}, s{sM}, 0x10000")
    e(f"{W}_enter:")
    wexp = {it.tag[1] for it in wrapped if it.tag[0] == "exp"}
    for r in range(16):
        e(f"v_mov_b32 v{S_(tl) + r}, " + ("0xff800000" if r in wexp else "0"))
    for t in range(3): e(f"v_mov_b32 v{L_(t)}, 0")
    e(f"s_mov_b32 s{sIT}, 8")
    stamp(e, (6, sHEAD, 5), opt)
    e(".p2align 6" if True else "")
    e(f"{W}_loop:")
    if opt.stamps == 3:
        e(f"s_lshl_b32 s93, s{sHEAD}, 3\ns_sub_u32 s93, s93, s{sIT}")
        stamp(e, (40, 93, 1), opt)
    for x in lines: e(x)
    e(f"s_cbranch_scc1 {W}_loop")
    stamp(e, (7, sHEAD, 5), opt)
    for it in wrapped:
        e(it.text)
        if it.tag[0] == "exp": e("s_nop 0")
    e("s_nop 1")
    for j in range(8): e(pv_mfma(tl, j))
    bad = T0 + 6
    for t in range(3): half_reduce(e, L_(t), T0, "v_add_f32")
    e(f"v_add_f32 v{T0}, v{L_(0)}, v{L_(1)}\nv_add_f32 v{T0+6}, v{T0}, v{L_(2)}")
    e(f"v_mov_b32 v{T0+4}, v{NM(2)}\nv_mov_b32 v{T0+5}, v{L_(2)}\nv_mov_b32 v{T0+7}, 0")
    e(f"v_add_u32 v{T0+1}, {MLAREA}, v{L16}")
    e(f"v_add_u32 v{T0+2}, {CBAREA}, v{L16}")
    e("s_waitcnt lgkmcnt(0)\ns_barrier")
    e(f"ds_write_b128 v{T0+1}, {vr(T0+4, 4)} offset:{w * 1024}")
    e("s_nop 7")
    for dt in range(4):
        if dt == w: continue
        j = (w - dt - 1) % 4
        for k in range(4):
            e(f"ds_write_b128 v{T0+2}, {ar(O_(2, dt) + 4 * k, 4)} offset:{(dt * 3 + j) * 4096 + k * 1024}")
    e("s_waitcnt lgkmcnt(0)\ns_barrier")
    R = T0 + 8
    for ww in range(4):
        e(f"ds_read_b128 {vr(R + 4 * ww, 4)}, v{T0+1} offset:{ww * 1024}")
    e("s_waitcnt lgkmcnt(0)")
    e(f"v_add_f32 v{T0}, v{R+2}, v{R+6}\nv_add_f32 v{T0+3}, v{R+10}, v{R+14}\nv_add_f32 v{T0}, v{T0}, v{T0+3}")
    e(f"v_cmp_nge_f32 vcc, s{sTHR}, v{T0}")
    e(f"s_cbranch_vccnz {W}_redo")
    e(f"{W}_ok:")
    stamp(e, (8, sHEAD, 5), opt)
    e(f"s_mov_b32 s{sTHR}, {f2u(-1.0 if opt.force_redo else THR):#x}")
    e(f"s_cmp_lg_u32 s{sHEAD}, 0\ns_cbranch_scc1 {W}_noq")
    for tau in range(2):
        for hf in range(2):
            e(f"s_mov_b32 s{sT}, {tau * 8192 + hf * 4096}")
            for k in range(4):
                e(f"buffer_load_dwordx4 {vr(Q_(tau) + 16 * hf + 4 * k, 4)}, v{L16}, {srd(SQ)}, s{sT} offen offset:{k * 1024} {opt.f_qld}")
    q2_read(e, 1)
    e(f"{W}_noq:")
    e(f"v_min3_f32 v{T0}, v{R}, v{R+4}, v{R+8}\nv_min_f32 v{T0}, v{T0}, v{R+12}")
    for ww in range(4):
        e(f"v_sub_f32 v{R+4*ww}, v{T0}, v{R+4*ww}")
    for ww in range(4):
        e(f"v_exp_f32 v{R+4*ww}, v{R+4*ww}")
    e("s_nop 0")
    e(f"v_mul_f32 v{T0}, v{R}, v{R+1}")
    for ww in range(1, 4):
        e(f"v_fmac_f32 v{T0}, v{R+4*ww}, v{R+4*ww+1}")
    e(f"v_rcp_f32 v{T0}, v{T0}\nv_rcp_f32 v{L_(0)}, v{L_(0)}\nv_rcp_f32 v{L_(1)}, v{L_(1)}\ns_nop 0")
    for ww in range(4):
        e(f"v_mul_f32 v{R+4*ww}, v{R+4*ww}, v{T0}")
    for j in range(3):
        for k in range(4):
            e(f"ds_read_b128 {vr(16 * j + 4 * k, 4)}, v{T0+2} offset:{(w * 3 + j) * 4096 + k * 1024}")
    e(f"s_lshl_b32 s{sT+1}, s{sHEAD}, 12\ns_add_u32 s{sT+1}, s{sT+1}, s{sT+10}")
    for t in range(2):
        e(f"s_add_u32 s{sT}, s{sT+1}, {(2 * w + t) * 262144}")
        e(f"v_mov_b32 v{T0+24}, v{L_(t)}\nv_mov_b32 v{T0+25}, v{L_(t)}")
        for dt in range(4):
            b = NM(dt & 1)
            for r in range(16): e(f"v_accvgpr_read_b32 v{b + r}, a{O_(t, dt) + r}")
            for r in range(0, 16, 2): e(f"v_pk_mul_f32 {vr(b + r, 2)}, {vr(b + r, 2)}, {vr(T0+24, 2)}")
            for r in range(8): e(f"v_cvt_pk_bf16_f32 v{b + r}, v{b + 2 * r}, v{b + 2 * r + 1}")
            e(f"buffer_store_dwordx4 {vr(b, 4)}, v{OV}, {srd(SO)}, s{sT} offen offset:{dt * 1024} {opt.f_ost}")
            e(f"buffer_store_dwordx4 {vr(b + 4, 4)}, v{OV}, {srd(SO)}, s{sT} offen offset:{dt * 1024 + 512} {opt.f_ost}")
    b = NM(2)
    for r in range(16): e(f"v_accvgpr_read_b32 v{b + r}, a{O_(2, w) + r}")
    for r in range(16): e(f"v_mul_f32 v{b + r}, v{b + r}, v{R + 4 * w}")
    e("s_waitcnt lgkmcnt(0)")
    for j in range(3):
        ww = (w + 1 + j) % 4
        for r in range(16): e(f"v_fmac_f32 v{b + r}, v{16 * j + r}, v{R + 4 * ww}")
    for r in range(8): e(f"v_cvt_pk_bf16_f32 v{b + r}, v{b + 2 * r}, v{b + 2 * r + 1}")
    e(f"s_add_u32 s{sT}, s{sT+1}, {8 * 262144}")
    e(f"buffer_store_dwordx4 {vr(b, 4)}, v{OV}, {srd(SO)}, s{sT} offen offset:{w * 1024} {opt.f_ost}")
    e(f"buffer_store_dwordx4 {vr(b + 4, 4)}, v{OV}, {srd(SO)}, s{sT} offen offset:{w * 1024 + 512} {opt.f_ost}")
    stamp(e, (9, sHEAD, 5), opt)
    e(f"s_cmp_lg_u32 s{sHEAD}, 0\ns_cbranch_scc1 K1_end")
    e(f"s_mov_b32 s{sHEAD}, 1\ns_mov_b32 s{sREDO}, 1")
    e("s_waitcnt vmcnt(18)")
    e(f"s_branch {W}_head")
    e(f"{W}_hook:")
    e(f"s_mov_b32 s{sEV}, 100\ns_mov_b32 s{sT}, 8192")
    e(f"buffer_load_dword v{VD}, v251, {srd(SQ)}, 0 offen\nbuffer_load_dword v{VD}, v251, {srd(SQ)}, s{sT} offen")
    e(f"s_branch {W}_hookret")
    e(f"{W}_redo:")
    e(f"s_cmp_lg_u32 s{sREDO}, s{sHEAD}\ns_cbranch_scc1 {W}_ok")
    e(f"s_add_u32 s{sREDO}, s{sHEAD}, 1")
    e(f"s_mov_b32 s{sT+12}, {w}")
    e("s_branch K1_maxpass")

def gen_maxpass(e, opt):
    e("K1_maxpass:")
    e("s_waitcnt vmcnt(0) lgkmcnt(0)\ns_barrier")
    MX = lambda t: T0 + 2 + t
    for t in range(3): e(f"v_mov_b32 v{MX(t)}, 0xff800000")
    e(f"s_lshl_b32 s{sT}, s{sHEAD}, 18\ns_lshl_b32 s{sT+1}, s{sW}, 12\ns_add_u32 s{sT}, s{sT}, s{sT+1}")
    e(f"s_mov_b32 s{sT+2}, 16")
    e("K1_mp_loop:")
    e(f"s_mov_b32 m0, s{sT+1}\ns_nop 0")
    for i in range(4):
        e(f"buffer_load_dwordx4 v{DK(i)}, {srd(SK0)}, s{sT} offen offset:{i * 1024} lds")
    e("s_waitcnt vmcnt(0)\ns_barrier")
    for sb in range(2):
        for s in range(8): e(f"ds_read_b128 {ar(KF(s), 4)}, v{KA(s)} offset:{sb * 8192}")
        e("s_waitcnt lgkmcnt(0)")
        for t in range(3):
            for s in range(8): e(qk_mfma(t, s, "0"))
        e("s_nop 15\ns_nop 3")
        for t in range(3):
            for r in range(0, 16, 2):
                e(f"v_max3_f32 v{MX(t)}, v{MX(t)}, v{S_(t)+r}, v{S_(t)+r+1}")
        e("s_nop 7")
    e("s_barrier")
    e(f"s_add_u32 s{sT}, s{sT}, 16384\ns_sub_u32 s{sT+2}, s{sT+2}, 1\ns_cmp_lg_u32 s{sT+2}, 0\ns_cbranch_scc1 K1_mp_loop")
    for t in range(3):
        half_reduce(e, MX(t), T0, "v_max_f32")
        for r in range(16): e(f"v_sub_f32 v{NM(t)+r}, 0, v{MX(t)}")
    prime_addr(e)
    e(f"s_lshl_b32 s{sT}, s{sHEAD}, 18\ns_add_u32 s{sT+3}, s{sT+7}, s{sT}\ns_add_u32 s{sT+3}, s{sT+3}, s{sROT}")
    e(f"s_add_u32 m0, s{sT+7}, {K0AREA}\ns_nop 0")
    e(f"buffer_load_dwordx4 v{T0+22}, {srd(SK0)}, s{sT+3} offen lds")
    e(f"buffer_load_dwordx4 v{T0+23}, {srd(SK0)}, s{sT+3} offen offset:1024 lds")
    e(f"s_lshl_b32 s{sM}, s{sW}, 12\ns_add_u32 s{sOFF}, s{sM}, s{sT}\ns_add_u32 s{sOFFK}, s{sOFF}, 8192")
    for gofs in (0, 32768, 65536):
        for it in kv_group_items(gofs, opt): e(it.text)
    e(f"s_xor_b32 s{sM}, s{sM}, 0x10000")
    e("s_waitcnt vmcnt(0)\ns_barrier")
    k0_read(e)
    for t in range(3):
        for dt in range(4):
            e(f"{MF32} {ar(O_(t, dt), 16)}, {vr(VZ, 4)}, {vr(VZ, 4)}, 0")
    e("s_waitcnt lgkmcnt(0)")
    for w in range(3):
        e(f"s_cmp_eq_u32 s{sT+12}, {w}\ns_cbranch_scc1 W{w}_enter")
    e("s_branch W3_enter")

def prime_addr(e):
    e(f"s_lshl_b32 s{sT+7}, s{sW}, 11")
    e(f"s_and_b32 s{sT+4}, s{sW}, 1\ns_lshl_b32 s{sT+4}, s{sT+4}, 7")
    e(f"v_xor_b32 v{T0+22}, s{sT+4}, v{DK(0)}")
    e(f"v_xor_b32 v{T0+23}, s{sT+4}, v{DK(1)}")

def k0_read(e):
    for s in range(8):
        e(f"v_add_u32 v{T0 + (s & 1)}, {K0AREA}, v{KA(s)}")
        e(f"ds_read_b128 {ar(KF(s), 4)}, v{T0 + (s & 1)}")

def mk_srd(e, d, lo, hi, size):
    e(f"s_mov_b32 s{d}, s{lo}\ns_and_b32 s{d+1}, s{hi}, 0xffff\ns_mov_b32 s{d+2}, {size}\ns_mov_b32 s{d+3}, 0x20000")

def add64(e, lo, off):
    e(f"s_add_u32 s{lo}, s{lo}, {off}\ns_addc_u32 s{lo+1}, s{lo+1}, 0")

def gen_k1(e, opt):
    e(".globl attn_kernel\n.p2align 8\n.type attn_kernel,@function\nattn_kernel:")
    e("s_cmp_ge_u32 s2, 256\ns_cbranch_scc1 K1_exit")
    stamp(e, 0, opt)
    e("s_load_dwordx8 s[44:51], s[0:1], 0\ns_load_dwordx8 s[52:59], s[0:1], 40\ns_load_dwordx2 s[4:5], s[0:1], 96")
    e(f"v_and_b32 v{LANE}, 63, v0\nv_lshrrev_b32 v1, 6, v0\nv_lshlrev_b32 v{L16}, 4, v{LANE}")
    e(f"v_readfirstlane_b32 s{sW}, v1")
    if opt.map48:
        e(f"s_bfe_u32 s{sP}, s2, 0x20001\ns_lshl_b32 s{sP}, s{sP}, 2\ns_lshr_b32 s{sT}, s2, 6\ns_add_u32 s{sP}, s{sP}, s{sT}")
        e(f"s_and_b32 s{sHP}, s2, 1\ns_lshl_b32 s{sHP}, s{sHP}, 3\ns_bfe_u32 s{sT+1}, s2, 0x30003\ns_add_u32 s{sHP}, s{sHP}, s{sT+1}")
        e(f"s_lshl_b32 s{sT}, s{sT}, 1\ns_xor_b32 s{sT+3}, s{sT}, s{sT+1}")
    else:
        e(f"s_and_b32 s{sP}, s2, 7\ns_lshl_b32 s{sP}, s{sP}, 1\ns_lshr_b32 s{sT+1}, s2, 7\ns_add_u32 s{sP}, s{sP}, s{sT+1}")
        e(f"s_bfe_u32 s{sHP}, s2, 0x40003")
        e(f"s_lshl_b32 s{sT+1}, s{sT+1}, 2\ns_and_b32 s{sT+3}, s{sHP}, 7\ns_xor_b32 s{sT+3}, s{sT+3}, s{sT+1}")
    if not opt.qrot: e(f"s_mov_b32 s{sT+3}, 0")
    e(f"s_and_b32 s{sT+2}, s{sP}, 7")
    e(f"s_lshl_b32 s{sT+10}, s{sHP}, 13")
    ln = LANE
    e(f"v_lshrrev_b32 v1, 4, v{ln}\nv_and_b32 v2, 15, v{ln}\nv_xor_b32 v3, v1, v2\nv_lshlrev_b32 v3, 4, v3\nv_lshl_add_u32 v{DK(0)}, v1, 8, v3")
    for i in range(1, 4): e(f"v_xor_b32 v{DK(i)}, {64 * i}, v{DK(0)}")
    e(f"v_lshlrev_b32 v3, 2, v1\nv_xor_b32 v3, v3, v2\nv_lshlrev_b32 v3, 4, v3\nv_lshl_add_u32 v{DV}, v1, 8, v3")
    e(f"v_and_b32 v1, 31, v{ln}\nv_lshrrev_b32 v3, 5, v{ln}\nv_xor_b32 v3, v3, v2\nv_lshlrev_b32 v3, 4, v3\nv_lshl_add_u32 v4, v1, 8, v3")
    e(f"s_lshl_b32 s{sT+4}, s{sW}, 6")
    e(f"v_xor_b32 v4, s{sT+4}, v4")
    for s in range(8): e(f"v_xor_b32 v{KA(s)}, {32 * s}, v4")
    e(f"v_and_b32 v1, 1, v{ln}\nv_lshlrev_b32 v1, 4, v1\nv_and_b32 v3, 2, v{ln}\nv_lshlrev_b32 v3, 2, v3\nv_or_b32 v1, v1, v3")
    e(f"v_and_b32 v3, 16, v{ln}\nv_lshlrev_b32 v3, 1, v3\nv_or_b32 v5, v1, v3")
    e(f"v_bfe_u32 v6, v{ln}, 2, 2\nv_lshrrev_b32 v7, 5, v{ln}")
    e(f"v_lshl_add_u32 v1, v7, 2, v6\nv_lshlrev_b32 v1, 8, v1\nv_lshl_add_u32 v1, v6, 6, v1\nv_or_b32 v1, v1, v5")
    for d in range(4): e(f"v_xor_b32 v{VA(d)}, {64 * d}, v1")
    e(f"v_lshl_add_u32 v1, v7, 3, v6\nv_lshlrev_b32 v1, 9, v1\nv_lshl_add_u32 v1, v6, 6, v1\nv_or_b32 v1, v1, v5\nv_xor_b32 v1, s{sT+4}, v1")
    for d in range(4): e(f"v_xor_b32 v{WA(d)}, {64 * d}, v1")
    e(f"v_and_b32 v1, 31, v{ln}\nv_bfe_u32 v3, v{ln}, 1, 3\nv_xor_b32 v3, v3, v7\nv_lshlrev_b32 v3, 4, v3\nv_lshl_add_u32 v1, v1, 7, v3")
    e(f"s_lshl_b32 s{sT+5}, s{sW}, 13\ns_add_u32 s{sT+5}, s{sT+5}, 32768")
    for k in range(4):
        e(f"v_xor_b32 v3, {32 * k}, v1\nv_add_u32 v{XA(k)}, s{sT+5}, v3\nv_add_u32 v{XA9(k)}, 0x10000, v3")
    e(f"v_and_b32 v1, 16, v{ln}\nv_lshlrev_b32 v1, 13, v1\nv_lshl_add_u32 v1, v7, 8, v1\nv_lshl_add_u32 v{OV}, v2, 4, v1")
    e(f"v_and_b32 v1, 31, v{ln}\nv_lshlrev_b32 v3, 2, v7\nv_xor_b32 v1, v1, v3\nv_lshlrev_b32 v1, 4, v1\nv_lshl_add_u32 v1, v7, 13, v1")
    for i in range(4):
        e(f"v_xor_b32 v3, {(i & 1) * 128}, v1\nv_add_u32 v{WQV(i)}, {i * (16384 - 1024)}, v3")
    e(f"v_lshrrev_b32 v1, 3, v{ln}\nv_and_b32 v3, 7, v{ln}\nv_lshrrev_b32 v4, 4, v{ln}\nv_xor_b32 v3, v3, v4\nv_lshlrev_b32 v3, 4, v3\nv_lshl_add_u32 v1, v1, 10, v3")
    for i in range(4):
        e(f"v_xor_b32 v3, {(i & 1) * 64}, v1\nv_add_u32 v{XV(i)}, {i * (8192 - 1024)}, v3")
    e(f"s_and_b32 s{sT+5}, s{sW}, 1\ns_lshl_b32 s{sT+5}, s{sT+5}, 6\nv_xor_b32 v3, s{sT+5}, v1")
    e(f"s_lshl_b32 s{sT+5}, s{sW}, 13\ns_add_u32 s{sT+5}, s{sT+5}, {256 * 1024}\nv_add_u32 v{XV9}, s{sT+5}, v3")
    e(f"s_lshl_b32 s{sWQ0}, s{sW}, 17")
    e(f"s_lshl_b32 s{sX0}, s{sW}, 16")
    e(f"s_lshl_b32 s{sX9}, s{sT+3}, 7\ns_or_b32 s{sX0}, s{sX0}, s{sX9}\ns_lshl_b32 s{sT+5}, s{sT+3}, 19\ns_or_b32 s{sWQ0}, s{sWQ0}, s{sT+5}")
    e(f"s_lshl_b32 s{sMW}, s{sW}, 13")
    e(f"s_add_u32 s{sMX}, s{sMW}, 32768")
    e(f"s_lshl_b32 s{sMX9}, s{sW}, 10\ns_add_u32 s{sMX9}, s{sMX9}, 65536")
    e("s_waitcnt lgkmcnt(0)")
    e(f"s_cmp_ge_u32 s{sP}, 8")
    for k in range(4): e(f"s_cselect_b64 s[{44+2*k}:{45+2*k}], s[{52+2*k}:{53+2*k}], s[{44+2*k}:{45+2*k}]")
    e(f"s_mul_i32 s{sT+11}, s{sT+2}, 294912"); add64(e, 44, f"s{sT+11}"); mk_srd(e, SX, 44, 45, 294912)
    e(f"s_lshl_b32 s{sT+11}, s{sHP}, 9"); add64(e, 50, f"s{sT+11}"); mk_srd(e, SWQ, 50, 51, 4194304 - 15 * 512)
    for stage in range(2):
        for it in qproj_dma_items(stage, opt): e(it.text)
    e(f"s_and_b32 s{sT+11}, s{sP}, 7\ns_lshl_b32 s{sT+11}, s{sT+11}, 23\ns_lshl_b32 s{sT+12}, s{sHP}, 19\ns_add_u32 s{sT+11}, s{sT+11}, s{sT+12}")
    add64(e, 46, f"s{sT+11}"); mk_srd(e, SK0, 46, 47, 524288)
    add64(e, 48, f"s{sT+11}"); mk_srd(e, SV, 48, 49, 524288)
    e(f"s_mov_b32 s6, s4\ns_mov_b32 s7, s5")
    e(f"s_mul_i32 s{sT+11}, s{sP}, {18 * 131072}"); add64(e, 6, f"s{sT+11}"); mk_srd(e, SO, 6, 7, 18 * 131072)
    e(f"s_lshl_b32 s{sT+11}, s2, 2\ns_add_u32 s{sT+11}, s{sT+11}, s{sW}\ns_lshl_b32 s{sT+11}, s{sT+11}, 14\ns_add_u32 s{sT+11}, s{sT+11}, {WS_Q}")
    e(f"s_mov_b32 s6, s4\ns_mov_b32 s7, s5"); add64(e, 6, f"s{sT+11}"); mk_srd(e, SQ, 6, 7, 16384)
    e(f"s_lshl_b32 s{sM}, s{sW}, 12\ns_mov_b32 s{sOFF}, s{sM}\ns_add_u32 s{sOFFK}, s{sOFF}, 8192")
    if opt.rot == 1:
        e(f"s_lshr_b32 s{sROT}, s2, 5\ns_add_u32 s{sROT}, s{sROT}, s2\ns_and_b32 s{sROT}, s{sROT}, 31\ns_lshl_b32 s{sROT}, s{sROT}, 13")
    elif opt.rot == 2:
        e(f"s_lshr_b32 s{sROT}, s2, 3\ns_and_b32 s{sROT}, s{sROT}, 31\ns_lshl_b32 s{sROT}, s{sROT}, 13")
    else:
        e(f"s_mov_b32 s{sROT}, 0")
    e("s_load_dwordx2 s[52:53], s[0:1], 32\ns_load_dwordx2 s[54:55], s[0:1], 72\ns_waitcnt lgkmcnt(0)")
    e(f"s_cmp_ge_u32 s2, 128\ns_cselect_b64 s[52:53], s[54:55], s[52:53]")
    e(f"s_and_b32 s{sT+11}, s2, 127\ns_lshl_b32 s{sT+11}, s{sT+11}, 2\ns_add_u32 s{sT+11}, s{sT+11}, s{sW}\ns_lshl_b32 s{sT+11}, s{sT+11}, 13")
    add64(e, 52, f"s{sT+11}"); mk_srd(e, SK, 52, 53, 8192 if opt.touch_wo else 0)
    e(f"s_mov_b32 s{sTO}, 0\ns_mov_b32 s{sEV}, {opt.qtouch}")
    e(f"v_lshlrev_b32 v251, 7, v{LANE}")
    e(f"s_mov_b32 s{sHEAD}, 0\ns_mov_b32 s{sREDO}, 0\ns_mov_b32 s{sTHR}, {f2u(-1.0 if opt.force_redo else THR):#x}")
    prime_addr(e)
    for r in range(4): e(f"v_mov_b32 v{VZ + r}, 0")
    for r in range(32): e(f"v_accvgpr_write_b32 a{VF(0) + r}, 0")
    stamp(e, 1, opt)
    e("s_waitcnt vmcnt(17)\ns_barrier")
    stamp(e, 2, opt)
    gen_qproj(e, opt)
    stamp(e, 3, opt)
    gen_qproj_epilogue(e, opt)
    stamp(e, 4, opt)
    if not opt.g2late: e(f"s_xor_b32 s{sM}, s{sM}, 0x10000")
    e(f"s_waitcnt lgkmcnt(0)\ns_barrier")
    q2_read(e, 0)
    k0_read(e)
    e("s_waitcnt lgkmcnt(0)")
    for w in range(1, 4):
        e(f"s_cmp_eq_u32 s{sW}, {w}\ns_cbranch_scc1 W{w}_head")
    for w in range(4):
        gen_attention(e, w, opt)
    gen_maxpass(e, opt)
    e("K1_end:")
    if opt.stamps:
        e("s_waitcnt vmcnt(0)"); stamp(e, 15, opt); stamp_flush(e, opt, 0, sW, 4)
    e("K1_exit:\ns_endpgm")

def gen_k2(e, opt):
    ACC = lambda nt, j: 4 * (nt * 9 + j)
    OB = lambda buf, j: 36 * buf + 4 * j + 32
    AF = lambda buf, nt: 176 + 16 * buf + 4 * nt
    WV = lambda i: 8 + i
    TA = lambda nt: 12 + nt
    l16 = 16
    SOO, SWO, SOUT = 8, 12, 16
    sJ = lambda j: 40 + j
    sWOFF, sMB = 50, 51
    e(".globl oproj_kernel\n.p2align 8\n.type oproj_kernel,@function\noproj_kernel:")
    e("s_cmp_ge_u32 s2, 256\ns_cbranch_scc1 K2_exit")
    stamp(e, 0, opt)
    e("s_load_dwordx2 s[20:21], s[0:1], 32\ns_load_dwordx2 s[22:23], s[0:1], 72\ns_load_dwordx2 s[24:25], s[0:1], 80\ns_load_dwordx2 s[26:27], s[0:1], 96")
    e("v_and_b32 v1, 63, v0\nv_lshrrev_b32 v2, 6, v0")
    e(f"v_lshlrev_b32 v{l16}, 4, v1")
    e("v_readfirstlane_b32 s36, v2")
    e("s_and_b32 s30, s2, 7\ns_lshl_b32 s30, s30, 1\ns_lshr_b32 s31, s2, 7\ns_add_u32 s30, s30, s31")
    e("s_bfe_u32 s31, s2, 0x10006")
    e("s_bfe_u32 s32, s2, 0x30003")
    e("v_lshrrev_b32 v3, 3, v1\nv_and_b32 v4, 7, v1\nv_and_b32 v5, 2, v3\nv_xor_b32 v4, v4, v5\nv_lshlrev_b32 v4, 4, v4\nv_lshl_add_u32 v3, v3, 10, v4")
    for i in range(4):
        e(f"v_xor_b32 v4, {(i & 1) * 64}, v3\nv_add_u32 v{WV(i)}, {i * 7168}, v4")
    e("v_lshrrev_b32 v3, 4, v1\nv_bfe_u32 v4, v1, 2, 2\nv_lshl_add_u32 v5, v3, 3, v4\nv_lshlrev_b32 v5, 7, v5")
    e("v_lshrrev_b32 v4, 1, v4\nv_and_b32 v3, 1, v3\nv_lshl_or_b32 v4, v3, 1, v4\nv_lshl_add_u32 v5, v4, 5, v5")
    e("v_and_b32 v4, 3, v1\nv_lshl_add_u32 v5, v4, 3, v5")
    e(f"s_lshl_b32 s{sMB}, s36, 14")
    e(f"v_add_u32 v5, s{sMB}, v5")
    for nt in range(4): e(f"v_xor_b32 v{TA(nt)}, {32 * nt}, v5")
    e(f"s_mul_i32 s33, s31, {9 * 131072}\ns_lshl_b32 s34, s36, 15\ns_add_u32 s33, s33, s34")
    for j in range(9): e(f"s_add_u32 s{sJ(j)}, s33, {j * 131072}")
    e(f"s_lshl_b32 s{sWOFF}, s36, 20")
    e(f"s_lshr_b32 s53, s2, 6\ns_lshl_b32 s53, s53, 1\ns_xor_b32 s53, s53, s32\ns_and_b32 s53, s53, {opt.krot}")
    e(f"s_lshl_b32 s54, s53, 15\ns_or_b32 s{sWOFF}, s{sWOFF}, s54\ns_lshl_b32 s54, s53, 10\nv_or_b32 v{l16}, s54, v{l16}")
    e("s_waitcnt lgkmcnt(0)")
    e("s_cmp_ge_u32 s30, 8\ns_cselect_b64 s[20:21], s[22:23], s[20:21]")
    e("s_lshl_b32 s34, s32, 7"); add64(e, 20, "s34"); mk_srd(e, SWO, 20, 21, 4194304 - 7 * 128)
    e(f"s_mul_i32 s34, s30, {18 * 131072}"); add64(e, 26, "s34"); mk_srd(e, SOO, 26, 27, 18 * 131072)
    mk_srd(e, SOUT, 24, 25, 8 * 288 * 1024 * 2)
    def wo_items(t):
        its = []
        for i in range(4):
            pre = f"s_add_u32 m0, s{sMB}, {(t & 3) * 4096}\ns_xor_b32 s52, s{sWOFF}, {t * 32768}\n" if i == 0 else ""
            its.append(Item(pre + f"buffer_load_dwordx4 v{WV(i)}, {srd(SWO)}, s52 offen offset:{i * 1024} {opt.f_wo} lds", cost=12 if i == 0 else 4))
        return its
    def o_items(t):
        its = []
        for j in range(9):
            pre = f"v_xor_b32 v{17 + (t & 1)}, {t * 1024}, v{l16}\n" if j == 0 else ""
            its.append(Item(pre + f"buffer_load_dwordx4 {vr(OB(t & 3, j), 4)}, v{17 + (t & 1)}, {srd(SOO)}, s{sJ(j)} offen {opt.f_old}", cost=8 if pre else 4))
        return its
    def a_items(t):
        return [Item(f"ds_read_b64_tr_b16 {vr(AF(t & 1, nt) + 2 * ee, 2)}, v{TA(nt)} offset:{(t & 3) * 4096 + ee * 512}", lds=("A", t, nt))
                for nt in range(4) for ee in range(2)]
    for it in wo_items(0): e(it.text)
    for t in range(-3, 0):
        for it in wo_items(t + 4) + o_items(t + 3): e(it.text)
    stamp(e, 1, opt)
    e("s_waitcnt vmcnt(39)")
    stamp(e, 2, opt)
    st = Stream(32 * 36, budget=8)
    for it in a_items(0): st.put(-1, it)
    st.put(-1, Item("s_waitcnt vmcnt(26)"))
    for t in range(32):
        for j in range(9):
            for nt in range(4):
                i = 36 * t + 4 * j + nt
                acc = ar(ACC(nt, j), 4)
                st.m[i] = f"{MF16} {acc}, {vr(AF(t & 1, nt), 4)}, {vr(OB(t & 3, j), 4)}, {'0' if t == 0 else acc}"
                st.need[i] = [("A", t, nt)]
        base = 36 * t
        its = []
        if t + 4 < 32: its += wo_items(t + 4)
        if t + 3 < 32: its += o_items(t + 3)
        g = base + 4
        for it in its:
            g = st.place(g, base + 33, it) + 2
            g = min(g, base + 33)
        if t + 1 < 32:
            g = base + 1
            for it in a_items(t + 1):
                g = st.place(g, base + 24, it) + 1
            def cnt(tt): return (4 if tt + 4 < 32 else 0) + (9 if tt + 3 < 32 else 0)
            st.put(base + 35, Item(f"s_waitcnt vmcnt({cnt(t - 1) + cnt(t)})"))
    lines, _ = st.linearize(safe_dist=8)
    for x in lines: e(x)
    stamp(e, 3, opt)
    e("v_and_b32 v3, 15, v1\nv_lshrrev_b32 v4, 4, v1\nv_xor_b32 v4, v4, v3\nv_lshlrev_b32 v4, 4, v4\nv_lshl_add_u32 v4, v3, 8, v4")
    e("s_mul_i32 s34, s36, 36864\nv_add_u32 v4, s34, v4")
    for nt in range(4): e(f"v_xor_b32 v{20 + nt}, {64 * nt}, v4")
    e("s_nop 7\ns_barrier")
    for j in range(9):
        for nt in range(4):
            e(f"ds_write_b128 v{20 + nt}, {ar(ACC(nt, j), 4)} offset:{j * 4096}")
    e("v_and_b32 v3, 7, v0\nv_lshrrev_b32 v4, 3, v0\nv_and_b32 v5, 15, v4\nv_lshlrev_b32 v6, 1, v3\nv_xor_b32 v6, v6, v5\nv_lshlrev_b32 v6, 4, v6\nv_lshl_add_u32 v6, v4, 8, v6")
    e("v_xor_b32 v7, 16, v6")
    for ww in range(4):
        e(f"v_add_u32 v{208 + 2 * ww}, {36864 * ww}, v6\nv_add_u32 v{209 + 2 * ww}, {36864 * ww}, v7")
    e("v_lshlrev_b32 v26, 11, v4\nv_lshl_add_u32 v26, v3, 4, v26")
    e(f"s_and_b32 s34, s30, 7\ns_mul_i32 s34, s34, {288 * 2048}\ns_mul_i32 s35, s31, {144 * 2048}\ns_add_u32 s34, s34, s35")
    e("s_lshr_b32 s35, s30, 3\ns_lshl_b32 s35, s35, 10\ns_add_u32 s34, s34, s35\ns_lshl_b32 s35, s32, 7\ns_add_u32 s34, s34, s35")
    e("s_waitcnt lgkmcnt(0)\ns_barrier")
    for it in range(5):
        if it == 4:
            e("s_cmp_ge_u32 s36, 2\ns_cbranch_scc1 K2_end")
        b = 32 + 32 * (it & 1)
        for ww in range(4):
            for hb in range(2):
                e(f"ds_read_b128 {vr(b + 8 * ww + 4 * hb, 4)}, v{208 + 2 * ww + hb} offset:{it * 8192}")
        e("s_waitcnt lgkmcnt(0)")
        for r in range(0, 8, 2):
            e(f"v_pk_add_f32 {vr(b + r, 2)}, {vr(b + r, 2)}, {vr(b + 8 + r, 2)}")
            e(f"v_pk_add_f32 {vr(b + 16 + r, 2)}, {vr(b + 16 + r, 2)}, {vr(b + 24 + r, 2)}")
        for r in range(0, 8, 2):
            e(f"v_pk_add_f32 {vr(b + r, 2)}, {vr(b + r, 2)}, {vr(b + 16 + r, 2)}")
        for r in range(4):
            e(f"v_cvt_pk_bf16_f32 v{b + r}, v{b + 2 * r}, v{b + 2 * r + 1}")
        e(f"buffer_store_dwordx4 {vr(b, 4)}, v26, {srd(SOUT)}, s34 offen {opt.f_out}")
        e("s_add_u32 s34, s34, 65536")
    e("K2_end:")
    if opt.stamps:
        e("s_waitcnt vmcnt(0)"); stamp(e, 4, opt); stamp_flush(e, opt, 1, 36, 26)
    e("K2_exit:\ns_endpgm")

def kd(e, name, vg, acc):
    e(f".p2align 6\n.amdhsa_kernel {name}")
    for x in (f".amdhsa_next_free_vgpr {vg}", ".amdhsa_next_free_sgpr 102", f".amdhsa_accum_offset {acc}",
              ".amdhsa_group_segment_fixed_size 0", ".amdhsa_kernarg_size 104", ".amdhsa_user_sgpr_count 2",
              ".amdhsa_user_sgpr_kernarg_segment_ptr 1", ".amdhsa_system_sgpr_workgroup_id_x 1",
              ".amdhsa_float_denorm_mode_32 3"):
        e.L.append("  " + x)
    e(".end_amdhsa_kernel")

def generate(opt):
    e = Em()
    hdr = open(f"cdna_kernels/{NAME}.s.ref").read().split("; Override launch")[0]
    e.L += hdr.rstrip().split("\n")
    e("; @launch kernel=attn_kernel grid=(256,1,1) block=(256,1,1) lds=163840")
    e("; @launch kernel=oproj_kernel grid=(256,1,1) block=(256,1,1) lds=147456")
    e('.amdgcn_target "amdgcn-amd-amdhsa--gfx950"\n.text')
    gen_k1(e, opt)
    gen_k2(e, opt)
    e('.section .rodata,"a"')
    kd(e, "attn_kernel", 512, 256)
    kd(e, "oproj_kernel", 512, 256)
    return e.text()

if __name__ == "__main__":
    opt = Opt()
    out = f"cdna_kernels/{NAME}.s"
    for a in sys.argv[1:]:
        if a.startswith("out="): out = a[4:]
        elif "=" in a:
            k, v = a.split("=", 1)
            setattr(opt, k, int(v) if v.lstrip("-").isdigit() else v.replace("+", " "))
    open(out, "w").write(generate(opt))
    print("wrote", out)
```
